```python
import torch

def _softmax(x, axis=-1):
    return torch.softmax(x, dim=axis)
def _gelu(x):
    return torch.nn.functional.gelu(x, approximate="tanh")
def _silu(x):
    return torch.nn.functional.silu(x)
def _sigmoid(x):
    return torch.sigmoid(x)
def _layernorm(x, axis=-1, eps=1e-5):
    m = x.mean(dim=axis, keepdim=True)
    v = x.var(dim=axis, keepdim=True, unbiased=False)
    return (x - m) / torch.sqrt(v + eps)
def _scatter_add(tgt, idx, src, axis=0):
    return tgt.clone().index_add_(axis, idx, src)
def _segment_sum(src, seg, n):
    out = torch.zeros((n,) + src.shape[1:], dtype=src.dtype)
    return out.index_add_(0, seg, src)
def _pad(x, pw):
    flat = tuple(v for pair in reversed(pw) for v in pair)
    return torch.nn.functional.pad(x, flat)

kernel_name = 'concat_heads__mha_block__spectral_gfnet__prompt'

def setup_inputs():

    _w = (lambda a: (lambda t: t.to(torch.bfloat16) if t.is_floating_point() else t)(torch.as_tensor(a)))
    def _A_setup():
        B, S, D, H = 1, 2048, 448, 16
        return {
            "x": _w((lambda *s: torch.randn(*s, dtype=torch.bfloat16) * 0.2)(B, S, D)),
            "wqkv": _w((lambda *s: torch.randn(*s, dtype=torch.bfloat16) * 0.2)(D, 3 * D)),
            "wo": _w((lambda *s: torch.randn(*s, dtype=torch.bfloat16) * 0.05)(D, D)),
        }
    _A_in = _A_setup()

    def _B_setup():
        B, S, D = 1, 2048, 448
        Df = D // 2 + 1
        return {
            "x": _w((lambda *s: torch.randn(*s, dtype=torch.bfloat16) * 0.05)(B, S, D)),
            "w_r": _w((lambda *s: torch.randn(*s, dtype=torch.bfloat16) * 6.4)(S, Df) * 0.02),
            "w_i": _w((lambda *s: torch.randn(*s, dtype=torch.bfloat16) * 6.4)(S, Df) * 0.02),
        }
    _B_in = _B_setup()

    return {
        "A_x": _A_in["x"],
        "A_wqkv": _A_in["wqkv"],
        "A_wo": _A_in["wo"],
        "B_x": _B_in["x"],
        "B_w_r": _B_in["w_r"],
        "B_w_i": _B_in["w_i"],
    }

def reference(A_x, A_wqkv, A_wo, B_x, B_w_r, B_w_i):
    def _A_ref(x, wqkv, wo):
        B, S, D = x.shape
        H = 16
        Dh = D // H
        qkv = (lambda x, *d: x.permute(*d))((x @ wqkv).reshape(B, S, 3, H, Dh), 2, 0, 3, 1, 4)
        q, k, v = qkv[0], qkv[1], qkv[2]
        scores = torch.einsum("bhqd,bhkd->bhqk", q, k) * (Dh ** -0.5)
        p = _softmax(scores, axis=-1)
        o = torch.einsum("bhqk,bhkd->bhqd", p, v)
        return (lambda x, *d: x.permute(*d))(o, 0, 2, 1, 3).reshape(B, S, D) @ wo

    def _B_ref(x, w_r, w_i):
        B, S, D = x.shape
        X = (lambda x, axes=(-2,-1): torch.fft.rfft2(x.float(), dim=axes))(x, axes=(-2, -1))
        W = w_r + 1j * w_i
        X = X * W
        y = (lambda x, s, axes=(-2,-1): torch.fft.irfft2(x, s=s, dim=axes).to(torch.bfloat16))(X, (S, D), axes=(-2, -1))
        return y

    a = _A_ref(A_x, A_wqkv, A_wo)
    b = _B_ref(B_x, B_w_r, B_w_i)
    return torch.concatenate([a, b], axis=-1)
```

```python
import numpy as np

def bf16_bits(x):
    u = int(np.float32(x).view(np.uint32))
    return ((u + 0x7fff + ((u >> 16) & 1)) >> 16) & 0xffff

def f32_bits(x):
    return int(np.float32(x).view(np.uint32))

class Asm:
    def __init__(self):
        self.lines = []
    def __call__(self, s):
        for l in s.strip("\n").split("\n"):
            self.lines.append("    " + l.strip())
    def label(self, l):
        self.lines.append(l + ":")
    def raw(self, s):
        self.lines.append(s)
    def text(self):
        return "\n".join(self.lines) + "\n"

def vr(b, n=1):
    return f"v{b}" if n == 1 else f"v[{b}:{b+n-1}]"
def sr(b, n=1):
    return f"s{b}" if n == 1 else f"s[{b}:{b+n-1}]"
def ar(b, n=1):
    return f"a{b}" if n == 1 else f"a[{b}:{b+n-1}]"

MB = 1 << 20
WS_Q = 0
WS_KV = 2 * MB
WS_X1 = 6 * MB
WS_WT = 8 * MB
WS_O = 10 * MB
WS_Z = 12 * MB
WS_SIZE = 14 * MB

def kdesc(name, vgpr, sgpr, accum):
    return f""".amdhsa_kernel {name}
  .amdhsa_next_free_vgpr {vgpr}
  .amdhsa_next_free_sgpr {sgpr}
  .amdhsa_accum_offset {accum}
  .amdhsa_group_segment_fixed_size 0
  .amdhsa_kernarg_size 72
  .amdhsa_user_sgpr_count 2
  .amdhsa_user_sgpr_kernarg_segment_ptr 1
  .amdhsa_system_sgpr_workgroup_id_x 1
.end_amdhsa_kernel
"""

def khead(a, name):
    a.raw(f".globl {name}")
    a.raw(".p2align 8")
    a.raw(f".type {name},@function")
    a.label(name)

def srd(a, d, base, size):
    a(f"s_mov_b32 s{d}, s{base}")
    a(f"s_and_b32 s{d+1}, s{base+1}, 0xffff")
    a(f"s_mov_b32 s{d+2}, {size}")
    a(f"s_mov_b32 s{d+3}, 0x20000")

def csel(a, d, t, f):
    a(f"s_mov_b32 s{d}, {f}")
    a(f"s_cselect_b32 s{d}, {t}, s{d}")
```

```python
from common import *
import math

K1_LDS = 448 * 224
QSCALE = (28 ** -0.5) * math.log2(math.e)

def gen_k1(a):
    name = "gemm1_kernel"
    khead(a, name)
    XF = 32
    ACC = 144
    WF = 200
    xf = lambda t, ks: XF + (t * 14 + ks) * 4
    acc = lambda t, nt: ACC + (t * 7 + nt) * 4
    wf = lambda b, nt: WF + (b * 7 + nt) * 4
    vLANE, vM, vG = 1, 2, 3
    vXO = [12, 13]
    vWO = 14
    vTR = [15, 16]
    vST = 17
    vT = [4, 5, 6, 7, 8, 9, 10, 11]
    vK2 = 24
    vWTS = 25
    vPAD = 26
    sTYPE, sMT, sNT4, sW = 20, 21, 22, 23
    SX, SW, SWS, SWR, SWI = 24, 28, 32, 36, 40
    sPITCH, sP4, sSOFF, sM0 = 44, 45, 46, 47
    sT = [48, 49, 50, 51, 52, 53]
    sMASKF = 54
    sU = 56
    sP48 = 57
    sSC = 58

    a("s_cmp_ge_u32 s2, 256")
    a("s_cbranch_scc1 L1_end")
    a("s_load_dwordx4 s[4:7], s[0:1], 0")
    a("s_load_dwordx2 s[8:9], s[0:1], 24")
    a("s_load_dwordx4 s[12:15], s[0:1], 32")
    a("s_load_dwordx2 s[10:11], s[0:1], 64")
    a("s_getpc_b64 s[16:17]")
    a("s_add_u32 s16, s16, ftab@rel32@lo+4")
    a("s_addc_u32 s17, s17, ftab@rel32@hi+12")
    a(f"s_and_b32 s{sTYPE}, s2, 7")
    a(f"s_lshr_b32 s{sTYPE}, s{sTYPE}, 1")
    a(f"s_and_b32 s{sMT}, s2, 1")
    a(f"s_lshl_b32 s{sMT}, s{sMT}, 3")
    a(f"s_lshr_b32 s{sT[0]}, s2, 3")
    a(f"s_and_b32 s{sT[0]}, s{sT[0]}, 7")
    a(f"s_add_u32 s{sMT}, s{sMT}, s{sT[0]}")
    a(f"s_lshr_b32 s{sNT4}, s2, 6")
    a(f"v_lshrrev_b32 v{vT[0]}, 6, v0")
    a(f"v_and_b32 v{vLANE}, 63, v0")
    a(f"v_readfirstlane_b32 s{sW}, v{vT[0]}")
    a(f"v_and_b32 v{vM}, 15, v0")
    a(f"v_lshrrev_b32 v{vG}, 4, v{vLANE}")
    a(f"s_cmp_eq_u32 s{sTYPE}, 3")
    a(f"s_cselect_b64 s[{sMASKF}:{sMASKF+1}], -1, 0")
    csel(a, sPITCH, 896, 2688)
    a(f"s_mul_i32 s{sT[0]}, s{sTYPE}, 896")
    a(f"s_cselect_b32 s{sT[0]}, 0, s{sT[0]}")
    a(f"s_mul_i32 s{sT[1]}, s{sNT4}, 224")
    a(f"s_add_u32 s{sT[0]}, s{sT[0]}, s{sT[1]}")
    a(f"s_lshl_b32 s{sP4}, s{sPITCH}, 2")
    a(f"s_mul_i32 s{sP48}, s{sPITCH}, 52")
    a(f"s_mul_i32 s{sT[1]}, s{sW}, s{sPITCH}")
    a(f"s_lshl_b32 s{sT[1]}, s{sT[1]}, 4")
    a(f"s_add_u32 s{sSOFF}, s{sT[0]}, s{sT[1]}")
    a(f"s_mul_i32 s{sM0}, s{sW}, {4*896}")
    a(f"s_lshl_b32 s{sT[0]}, s{sMT}, 7")
    a(f"s_lshl_b32 s{sT[1]}, s{sW}, 5")
    a(f"s_add_u32 s{sT[0]}, s{sT[0]}, s{sT[1]}")
    a(f"s_and_b32 s{sT[1]}, s{sW}, 1")
    a(f"s_lshl_b32 s{sT[1]}, s{sT[1]}, 9")
    a(f"s_lshl_b32 s{sT[2]}, s{sMT}, 1")
    a(f"s_add_u32 s{sT[1]}, s{sT[1]}, s{sT[2]}")
    a(f"s_lshr_b32 s{sT[2]}, s{sW}, 1")
    a(f"s_add_u32 s{sT[1]}, s{sT[1]}, s{sT[2]}")
    a(f"s_cmp_eq_u32 s{sTYPE}, 3")
    a(f"s_cselect_b32 s{sT[0]}, s{sT[1]}, s{sT[0]}")
    csel(a, sT[1], 1024*896, 8*896)
    a(f"v_and_b32 v{vT[0]}, 7, v{vM}")
    a(f"v_and_b32 v{vT[1]}, 8, v{vM}")
    a(f"v_lshl_add_u32 v{vT[0]}, v{vT[1]}, 1, v{vT[0]}")
    a(f"v_lshlrev_b32 v{vT[1]}, 5, v{vM}")
    a(f"v_cndmask_b32 v{vT[2]}, v{vT[0]}, v{vT[1]}, s[{sMASKF}:{sMASKF+1}]")
    a(f"v_add_u32 v{vT[2]}, s{sT[0]}, v{vT[2]}")
    a(f"v_mul_u32_u24 v{vT[2]}, 896, v{vT[2]}")
    a(f"v_lshl_add_u32 v{vXO[0]}, v{vG}, 4, v{vT[2]}")
    a(f"v_add_u32 v{vXO[1]}, s{sT[1]}, v{vXO[0]}")
    a(f"v_mul_u32_u24 v{vT[3]}, 37, v{vLANE}")
    a(f"v_lshrrev_b32 v{vT[3]}, 9, v{vT[3]}")
    a(f"v_mul_u32_u24 v{vT[4]}, 14, v{vT[3]}")
    a(f"v_sub_u32 v{vT[4]}, v{vLANE}, v{vT[4]}")
    a(f"v_mul_lo_u32 v{vT[3]}, v{vT[3]}, s{sPITCH}")
    a(f"v_lshl_add_u32 v{vWO}, v{vT[4]}, 4, v{vT[3]}")
    a(f"s_bfe_u32 s{sT[2]}, s2, 0x10004")
    a(f"s_and_b32 s{sT[3]}, s2, 7")
    a(f"s_lshl_b32 s{sT[3]}, s{sT[3]}, 1")
    a(f"s_or_b32 s{sT[2]}, s{sT[2]}, s{sT[3]}")
    a(f"s_bfe_u32 s{sT[3]}, s2, 0x10005")
    a(f"s_lshl_b32 s{sT[3]}, s{sT[3]}, 4")
    a(f"s_or_b32 s{sT[2]}, s{sT[2]}, s{sT[3]}")
    a(f"s_bfe_u32 s{sT[3]}, s2, 0x10003")
    a(f"s_bfe_u32 s{sT[4]}, s2, 0x10006")
    a(f"s_bfe_u32 s{sT[5]}, s2, 0x10007")
    a(f"s_lshl_b32 s{sU}, s{sT[2]}, 1")
    a(f"s_add_u32 s{sU}, s{sU}, s{sT[4]}")
    a(f"s_lshl_b32 s59, s{sT[3]}, 10")
    a(f"s_add_u32 s{sU}, s{sU}, s59")
    a(f"s_lshl_b32 s59, s{sT[5]}, 8")
    a(f"s_add_u32 s{sU}, s{sU}, s59")
    a(f"s_mul_i32 s{sU}, s{sU}, 450")
    a(f"s_lshl_b32 s59, s{sT[5]}, 5")
    a(f"s_add_u32 s59, s59, s{sT[2]}")
    a(f"s_lshl_b32 s59, s59, 6")
    a(f"s_lshl_b32 s60, s{sT[4]}, 12")
    a(f"s_add_u32 s59, s59, s60")
    a(f"s_lshl_b32 s60, s{sT[3]}, 5")
    a(f"s_add_u32 s59, s59, s60")
    a(f"s_add_u32 s59, s59, {WS_WT}")
    a(f"v_lshlrev_b32 v{vK2}, 1, v0")
    a(f"v_lshlrev_b32 v{vWTS}, 13, v0")
    a(f"v_add_u32 v{vWTS}, s59, v{vWTS}")
    a("s_waitcnt lgkmcnt(0)")
    a(f"s_cmp_eq_u32 s{sTYPE}, 3")
    a(f"s_cselect_b32 s{SX}, s8, s4")
    a(f"s_cselect_b32 s{SX+1}, s9, s5")
    a(f"s_cselect_b32 s{SW}, s16, s6")
    a(f"s_cselect_b32 s{SW+1}, s17, s7")
    csel(a, SW+2, 448*896, 448*2688)
    a(f"s_and_b32 s{SX+1}, s{SX+1}, 0xffff")
    a(f"s_and_b32 s{SW+1}, s{SW+1}, 0xffff")
    a(f"s_mov_b32 s{SX+2}, {2048*896}")
    a(f"s_mov_b32 s{SX+3}, 0x20000")
    a(f"s_mov_b32 s{SW+3}, 0x20000")
    srd(a, SWS, 10, WS_SIZE)
    srd(a, SWR, 12, 2048 * 450)
    srd(a, SWI, 14, 2048 * 450)
    swap = [0, 2, 1, 3]
    def issue_chunk(c):
        a("s_mov_b32 exec_hi, 0x00ffffff")
        for jj in range(4):
            j = swap[jj]
            a(f"s_add_u32 m0, s{sM0}, {(16*c + j)*896}")
            a("s_nop 0")
            a(f"buffer_load_dwordx4 v{vWO}, s[{SW}:{SW+3}], s{sSOFF} offen lds")
            a(f"s_add_u32 s{sSOFF}, s{sSOFF}, s{sP4 if jj < 3 else sP48}")
        a("s_mov_b32 exec_hi, -1")
        for ks in (2*c, 2*c+1):
            for t in range(2):
                a(f"buffer_load_dwordx4 {vr(xf(t,ks),4)}, v{vXO[t]}, s[{SX}:{SX+3}], 0 offen offset:{ks*64}")
    issue_chunk(0)
    issue_chunk(1)
    for e in range(8):
        off = 64 * ((e & 3) + 8 * (e >> 2)) * 450
        a(f"s_add_u32 s59, s{sU}, {off}")
        a(f"buffer_load_ushort a{e}, v{vK2}, s[{SWR}:{SWR+3}], s59 offen")
        a(f"buffer_load_ushort a{8+e}, v{vK2}, s[{SWI}:{SWI+3}], s59 offen")
    for c in range(2, 7):
        issue_chunk(c)
    a(f"v_lshrrev_b32 v{vT[0]}, 1, v{vG}")
    a(f"v_and_b32 v{vT[1]}, 1, v{vG}")
    a(f"v_lshl_add_u32 v{vT[0]}, v{vT[0]}, 2, v{vT[1]}")
    a(f"v_mul_u32_u24 v{vT[0]}, 896, v{vT[0]}")
    a(f"v_lshrrev_b32 v{vT[1]}, 2, v{vM}")
    a(f"v_mul_u32_u24 v{vT[1]}, 224, v{vT[1]}")
    a(f"v_and_b32 v{vT[2]}, 3, v{vM}")
    a(f"v_lshl_add_u32 v{vT[1]}, v{vT[2]}, 3, v{vT[1]}")
    a(f"v_add_u32 v{vTR[0]}, v{vT[0]}, v{vT[1]}")
    a(f"v_add_u32 v{vTR[1]}, {8*7168}, v{vTR[0]}")
    for i in range(56):
        a(f"v_mov_b32 v{ACC+i}, 0")

    def reads(ks, b):
        base, koff = (vTR[0], ks) if ks < 8 else (vTR[1], ks - 8)
        for nt in range(7):
            for rho in range(2):
                off = koff * 7168 + rho * 1792 + nt * 32
                a(f"ds_read_b64_tr_b16 {vr(wf(b,nt)+2*rho,2)}, v{base} offset:{off}")
    def mfmas(ks, b, swapab):
        for nt in range(7):
            for t in range(2):
                A, B = vr(xf(t, ks), 4), vr(wf(b, nt), 4)
                if swapab: A, B = B, A
                a(f"v_mfma_f32_16x16x32_bf16 {vr(acc(t,nt),4)}, {A}, {B}, {vr(acc(t,nt),4)}")
    def mainloop(swapab):
        def vmwait(c):
            n = (6 - c) * 8 + (16 if c < 2 else 0)
            return min(n, 63)
        for c in range(7):
            a(f"s_waitcnt vmcnt({vmwait(c)})")
            a("s_barrier")
            reads(2*c, 0)
            if c > 0:
                a("s_waitcnt lgkmcnt(14)")
                mfmas(2*c-1, 1, swapab)
            reads(2*c+1, 1)
            a("s_waitcnt lgkmcnt(14)")
            mfmas(2*c, 0, swapab)
        a("s_waitcnt lgkmcnt(0)")
        mfmas(13, 1, swapab)

    a(f"s_cmp_ge_u32 s{sTYPE}, 2")
    a("s_cbranch_scc1 L1_vf")
    a(f"s_lshl_b32 s{sT[0]}, s{sMT}, 2")
    a(f"s_add_u32 s{sT[0]}, s{sT[0]}, s{sW}")
    a(f"s_lshl_b32 s{sT[0]}, s{sT[0]}, 11")
    a(f"s_lshl_b32 s{sT[1]}, s{sNT4}, 19")
    a(f"s_add_u32 s{sT[0]}, s{sT[0]}, s{sT[1]}")
    a(f"s_lshl_b32 s{sT[0]}, s{sT[0]}, s{sTYPE}")
    a(f"s_cmp_eq_u32 s{sTYPE}, 0")
    a(f"s_cselect_b32 s{sT[1]}, {WS_Q}, {WS_KV}")
    a(f"s_add_u32 s{sT[0]}, s{sT[0]}, s{sT[1]}")
    a(f"s_cmp_eq_u32 s{sTYPE}, 0")
    csel(a, sT[1], 131072, 262144)
    a(f"s_cselect_b32 s{sSC}, {f32_bits(QSCALE):#x}, 1.0")
    a(f"v_and_b32 v{vT[0]}, 7, v{vM}")
    a(f"v_and_b32 v{vT[1]}, 8, v{vM}")
    a(f"v_lshl_add_u32 v{vT[0]}, v{vT[1]}, 1, v{vT[0]}")
    a(f"v_lshlrev_b32 v{vT[0]}, 6, v{vT[0]}")
    a(f"v_add_u32 v{vT[0]}, s{sT[0]}, v{vT[0]}")
    a(f"v_bfe_u32 v{vT[1]}, v{vM}, 2, 1")
    for nt in range(7):
        a(f"v_add_u32 v{vT[2]}, {4*nt}, v{vG}")
        a(f"v_mul_u32_u24 v{vT[3]}, 37, v{vT[2]}")
        a(f"v_lshrrev_b32 v{vT[3]}, 8, v{vT[3]}")
        a(f"v_mul_u32_u24 v{vT[4]}, 7, v{vT[3]}")
        a(f"v_sub_u32 v{vT[2]}, v{vT[2]}, v{vT[4]}")
        a(f"v_mul_lo_u32 v{vT[3]}, v{vT[3]}, s{sT[1]}")
        a(f"v_lshrrev_b32 v{vT[4]}, 1, v{vT[2]}")
        a(f"v_xor_b32 v{vT[4]}, v{vT[4]}, v{vT[1]}")
        a(f"v_lshl_add_u32 v{vT[3]}, v{vT[4]}, 4, v{vT[3]}")
        a(f"v_and_b32 v{vT[2]}, 1, v{vT[2]}")
        a(f"v_lshl_add_u32 v{vT[3]}, v{vT[2]}, 3, v{vT[3]}")
        a(f"v_add_u32 v{vST+nt}, v{vT[3]}, v{vT[0]}")
    a(f"v_and_b32 v{vT[2]}, 31, v{vLANE}")
    a(f"v_bfe_u32 v{vT[3]}, v{vLANE}, 2, 2")
    a(f"v_xor_b32 v{vT[3]}, 3, v{vT[3]}")
    a(f"v_lshlrev_b32 v{vT[3]}, 4, v{vT[3]}")
    a(f"v_lshl_add_u32 v{vT[2]}, v{vT[2]}, 6, v{vT[3]}")
    a(f"v_lshrrev_b32 v{vT[3]}, 5, v{vLANE}")
    a(f"v_mul_lo_u32 v{vT[3]}, v{vT[3]}, s{sT[1]}")
    a(f"v_add3_u32 v{vPAD}, v{vT[2]}, v{vT[3]}, s{sT[0]}")
    a(f"s_lshl_b32 s{sT[2]}, s{sT[1]}, 1")
    mainloop(True)
    a(f"v_mov_b32 v{vT[6]}, 0")
    a(f"v_mov_b32 v{vT[7]}, 0")
    a(f"buffer_store_dwordx2 {vr(vT[6],2)}, v{vPAD}, s[{SWS}:{SWS+3}], 0 offen offset:8")
    a(f"buffer_store_dwordx2 {vr(vT[6],2)}, v{vPAD}, s[{SWS}:{SWS+3}], s{sT[2]} offen offset:8")
    a("s_nop 7")
    for nt in range(7):
        for t in range(2):
            r = acc(t, nt)
            for i in range(4):
                a(f"v_mul_f32 v{r+i}, s{sSC}, v{r+i}")
            a(f"v_cvt_pk_bf16_f32 v{r}, v{r}, v{r+1}")
            a(f"v_cvt_pk_bf16_f32 v{r+1}, v{r+2}, v{r+3}")
            if t == 0:
                a(f"buffer_store_dwordx2 {vr(r,2)}, v{vST+nt}, s[{SWS}:{SWS+3}], 0 offen")
            else:
                a(f"v_xor_b32 v{r+2}, 32, v{vST+nt}")
                a(f"buffer_store_dwordx2 {vr(r,2)}, v{r+2}, s[{SWS}:{SWS+3}], 0 offen offset:512")
    a("s_branch L1_side")
    a.label("L1_vf")
    a(f"s_cmp_eq_u32 s{sTYPE}, 3")
    a("s_cbranch_scc1 L1_fpre")
    a(f"s_lshl_b32 s{sT[0]}, s{sMT}, 2")
    a(f"s_add_u32 s{sT[0]}, s{sT[0]}, s{sW}")
    a(f"s_lshl_b32 s{sT[0]}, s{sT[0]}, 12")
    a(f"s_lshl_b32 s{sT[1]}, s{sNT4}, 20")
    a(f"s_add_u32 s{sT[0]}, s{sT[0]}, s{sT[1]}")
    a(f"s_add_u32 s{sT[0]}, s{sT[0]}, {WS_KV + 2048}")
    for nt in range(7):
        a(f"v_add_u32 v{vT[2]}, {16*nt}, v{vM}")
        a(f"v_mul_u32_u24 v{vT[3]}, 147, v{vT[2]}")
        a(f"v_lshrrev_b32 v{vT[3]}, 12, v{vT[3]}")
        a(f"v_mul_u32_u24 v{vT[4]}, 28, v{vT[3]}")
        a(f"v_sub_u32 v{vT[2]}, v{vT[2]}, v{vT[4]}")
        a(f"v_bfe_u32 v{vT[4]}, v{vT[2]}, 2, 2")
        a(f"v_xor_b32 v{vT[4]}, v{vT[4]}, v{vG}")
        a(f"v_lshlrev_b32 v{vT[3]}, 18, v{vT[3]}")
        a(f"v_lshl_add_u32 v{vT[3]}, v{vT[2]}, 6, v{vT[3]}")
        a(f"v_lshl_add_u32 v{vT[3]}, v{vT[4]}, 4, v{vT[3]}")
        a(f"v_add_u32 v{vST+nt}, s{sT[0]}, v{vT[3]}")
    a(f"v_lshlrev_b32 v{vT[3]}, 18, v{vG}")
    a(f"v_lshl_add_u32 v{vT[3]}, v{vM}, 4, v{vT[3]}")
    a(f"v_add_u32 v{vPAD}, s{sT[0]}, v{vT[3]}")
    a("s_branch L1_vfmain")
    a.label("L1_fpre")
    a(f"s_mul_i32 s{sT[0]}, s{sNT4}, {112*2048}")
    a(f"s_lshl_b32 s{sT[1]}, s{sMT}, 1")
    a(f"s_lshr_b32 s{sT[2]}, s{sW}, 1")
    a(f"s_add_u32 s{sT[1]}, s{sT[1]}, s{sT[2]}")
    a(f"s_lshl_b32 s{sT[1]}, s{sT[1]}, 6")
    a(f"s_add_u32 s{sT[0]}, s{sT[0]}, s{sT[1]}")
    a(f"s_and_b32 s{sT[1]}, s{sW}, 1")
    a(f"s_lshl_b32 s{sT[1]}, s{sT[1]}, 5")
    a(f"s_add_u32 s{sT[0]}, s{sT[0]}, s{sT[1]}")
    a(f"s_add_u32 s{sT[0]}, s{sT[0]}, {WS_X1}")
    a(f"v_lshlrev_b32 v{vT[3]}, 11, v{vM}")
    a(f"v_lshl_add_u32 v{vT[3]}, v{vG}, 3, v{vT[3]}")
    a(f"v_add_u32 v{vST}, s{sT[0]}, v{vT[3]}")
    a.label("L1_vfmain")
    mainloop(False)
    a(f"s_cmp_eq_u32 s{sTYPE}, 3")
    a("s_cbranch_scc1 L1_fepi")
    for i in range(4):
        a(f"v_mov_b32 v{vT[4+i]}, 0x3f803f80")
    a(f"buffer_store_dwordx4 {vr(vT[4],4)}, v{vPAD}, s[{SWS}:{SWS+3}], 0 offen offset:{28*64}")
    a("s_nop 7")
    for nt in range(7):
        r0, r1 = acc(0, nt), acc(1, nt)
        a(f"v_cvt_pk_bf16_f32 v{r0}, v{r0}, v{r0+1}")
        a(f"v_cvt_pk_bf16_f32 v{r0+1}, v{r0+2}, v{r0+3}")
        a(f"v_cvt_pk_bf16_f32 v{r0+2}, v{r1}, v{r1+1}")
        a(f"v_cvt_pk_bf16_f32 v{r0+3}, v{r1+2}, v{r1+3}")
        a(f"buffer_store_dwordx4 {vr(r0,4)}, v{vST+nt}, s[{SWS}:{SWS+3}], 0 offen")
    a("s_branch L1_side")
    a.label("L1_fepi")
    a("s_nop 7")
    for nt in range(7):
        r0, r1 = acc(0, nt), acc(1, nt)
        w0 = wf(0, nt)
        for i in range(4):
            a(f"v_add_f32 v{w0+i}, v{r0+i}, v{r1+i}")
            a(f"v_sub_f32 v{r1+i}, v{r0+i}, v{r1+i}")
        a(f"v_cvt_pk_bf16_f32 v{r0}, v{w0}, v{w0+1}")
        a(f"v_cvt_pk_bf16_f32 v{r0+1}, v{w0+2}, v{w0+3}")
        a(f"v_cvt_pk_bf16_f32 v{r0+2}, v{r1}, v{r1+1}")
        a(f"v_cvt_pk_bf16_f32 v{r0+3}, v{r1+2}, v{r1+3}")
        a(f"s_mov_b32 s59, {nt*16*2048}")
        a(f"s_mov_b32 s60, {nt*16*2048 + 448*2048}")
        a(f"buffer_store_dwordx2 {vr(r0,2)}, v{vST}, s[{SWS}:{SWS+3}], s59 offen")
        a(f"buffer_store_dwordx2 {vr(r0+2,2)}, v{vST}, s[{SWS}:{SWS+3}], s60 offen")
    a.label("L1_side")
    for e in range(8):
        a(f"v_accvgpr_read_b32 v{XF+e}, a{e}")
        a(f"v_accvgpr_read_b32 v{XF+8+e}, a{8+e}")
    for e in range(8):
        a(f"v_lshl_or_b32 v{XF+e}, v{XF+8+e}, 16, v{XF+e}")
    a("v_cmp_gt_u32 vcc, 225, v0")
    a("s_and_saveexec_b64 s[60:61], vcc")
    a("s_cbranch_execz L1_end")
    a(f"buffer_store_dwordx4 {vr(XF,4)}, v{vWTS}, s[{SWS}:{SWS+3}], 0 offen")
    a(f"buffer_store_dwordx4 {vr(XF+4,4)}, v{vWTS}, s[{SWS}:{SWS+3}], 0 offen offset:16")
    a.label("L1_end")
    a("s_endpgm")
    return kdesc(name, 272, 64, 256), f"; @launch kernel={name} grid=(256,1,1) block=(256,1,1) lds={K1_LDS}"
```

```python
from common import *
import math

RING = 65536
CMB = RING
CMB_W = 4352
FLAG = CMB + 4 * CMB_W
K2_LDS = FLAG + 64

def dorder(r, h):
    return (r & 3) + 8 * (r >> 2) + 4 * h

def fft_tables():
    quads = []
    def pack_mat(fn):
        out = []
        for t in range(2):
            q = np.zeros((64, 4), np.uint32)
            for l in range(64):
                lam, h = l & 31, l >> 5
                for j in range(4):
                    lo = bf16_bits(fn(lam, h, t, 2 * j)); hi = bf16_bits(fn(lam, h, t, 2 * j + 1))
                    q[l, j] = lo | (hi << 16)
            out.append(q)
        return out
    def pack_f32(fn):
        out = []
        for qd in range(4):
            q = np.zeros((64, 4), np.uint32)
            for l in range(64):
                lam, h = l & 31, l >> 5
                for j in range(4):
                    q[l, j] = f32_bits(fn(lam, h, 4 * qd + j))
            out.append(q)
        return out
    kap = lambda h, t, e: dorder(8 * t + e, h)
    tp = 2 * np.pi
    quads += pack_mat(lambda lam, h, t, e: np.cos(tp * lam * kap(h, t, e) / 32))
    quads += pack_mat(lambda lam, h, t, e: -np.sin(tp * lam * kap(h, t, e) / 32))
    quads += pack_mat(lambda lam, h, t, e: np.sin(tp * lam * kap(h, t, e) / 32))
    scale = 2.0 / (2048 * 448)
    for p in range(2):
        s1 = lambda h, t, e: 16 * h + 8 * t + e
        quads += pack_mat(lambda v1, h, t, e: np.cos(tp * s1(h, t, e) * (2 * v1 + p) / 64))
        quads += pack_mat(lambda v1, h, t, e: -np.sin(tp * s1(h, t, e) * (2 * v1 + p) / 64))
        quads += pack_mat(lambda v1, h, t, e: np.sin(tp * s1(h, t, e) * (2 * v1 + p) / 64))
        quads += pack_f32(lambda v1, h, r: np.cos(tp * dorder(r, h) * (2 * v1 + p) / 2048))
        quads += pack_f32(lambda v1, h, r: -np.sin(tp * dorder(r, h) * (2 * v1 + p) / 2048))
        quads += pack_f32(lambda s2, h, r: scale * np.cos(tp * s2 * (2 * dorder(r, h) + p) / 2048))
        quads += pack_f32(lambda s2, h, r: scale * np.sin(tp * s2 * (2 * dorder(r, h) + p) / 2048))
        quads += pack_mat(lambda s1_, h, t, e: np.cos(tp * s1_ * (2 * kap(h, t, e) + p) / 64))
        quads += pack_mat(lambda s1_, h, t, e: np.sin(tp * s1_ * (2 * kap(h, t, e) + p) / 64))
        quads += pack_mat(lambda s1_, h, t, e: -np.sin(tp * s1_ * (2 * kap(h, t, e) + p) / 64))
    return np.concatenate([q.reshape(-1) for q in quads])

TAB_BYTES = (6 + 56) * 1024

def gen_k2(a):
    name = "attn_fft_kernel"
    khead(a, name)
    SWS, SKV, STB = 8, 12, 16
    sHEAD, sQB, sW, sQS, sKH = 20, 21, 22, 23, 24
    sT = [25, 26, 27, 28, 29]
    sMODE, sCNT, sDOFF, sM0, sSEL = 30, 31, 32, 33, 34
    sQOFF = 35
    vLANE = 1
    vA0, vA1, vL0, vL1, vD = 2, 3, 4, 5, 6
    vMX = 7
    vT = [8, 9, 10, 11, 12, 13, 14, 15]
    Q = 16
    KF = 24
    VF = 40
    P = 56
    S = 72
    O = 104
    NM = 120
    a("s_cmp_ge_u32 s2, 256")
    a("s_cbranch_scc1 L2_end")
    a("s_load_dwordx2 s[4:5], s[0:1], 64")
    a(f"v_lshrrev_b32 v{vT[0]}, 6, v0")
    a(f"v_and_b32 v{vLANE}, 63, v0")
    a(f"v_readfirstlane_b32 s{sW}, v{vT[0]}")
    a(f"s_and_b32 s{sHEAD}, s2, 7")
    a(f"s_lshl_b32 s{sHEAD}, s{sHEAD}, 1")
    a(f"s_bfe_u32 s{sT[0]}, s2, 0x10003")
    a(f"s_add_u32 s{sHEAD}, s{sHEAD}, s{sT[0]}")
    a(f"s_lshr_b32 s{sQB}, s2, 4")
    a(f"s_cmp_ge_u32 s{sW}, 8")
    a("s_cbranch_scc1 L2_fft")
    a(f"s_and_b32 s{sQS}, s{sW}, 3")
    a(f"s_lshr_b32 s{sKH}, s{sW}, 2")
    a(f"v_and_b32 v{vT[0]}, 31, v{vLANE}")
    a(f"v_lshrrev_b32 v{vT[1]}, 5, v{vLANE}")
    a(f"v_bfe_u32 v{vT[2]}, v{vLANE}, 2, 2")
    a(f"v_xor_b32 v{vT[1]}, v{vT[1]}, v{vT[2]}")
    a(f"v_lshlrev_b32 v{vT[1]}, 4, v{vT[1]}")
    a(f"v_lshl_add_u32 v{vA0}, v{vT[0]}, 6, v{vT[1]}")
    a(f"v_xor_b32 v{vA1}, 32, v{vA0}")
    a(f"s_lshl_b32 s{sT[0]}, s{sKH}, 13")
    a(f"v_add_u32 v{vL0}, s{sT[0]}, v{vA0}")
    a(f"v_add_u32 v{vL1}, s{sT[0]}, v{vA1}")
    a(f"s_lshl_b32 s{sT[1]}, s{sQS}, 11")
    a(f"v_lshlrev_b32 v{vD}, 4, v{vLANE}")
    a(f"v_add_u32 v{vD}, s{sT[1]}, v{vD}")
    a(f"s_add_u32 s{sM0}, s{sT[0]}, s{sT[1]}")
    a(f"s_lshl_b32 s{sQOFF}, s{sQB}, 2")
    a(f"s_add_u32 s{sQOFF}, s{sQOFF}, s{sQS}")
    a(f"s_lshl_b32 s{sQOFF}, s{sQOFF}, 11")
    a(f"s_lshl_b32 s{sT[0]}, s{sHEAD}, 17")
    a(f"s_add_u32 s{sQOFF}, s{sQOFF}, s{sT[0]}")
    a(f"s_lshl_b32 s{sT[0]}, s{sHEAD}, 18")
    a(f"s_lshl_b32 s{sT[1]}, s{sKH}, 17")
    a(f"s_add_u32 s{sT[0]}, s{sT[0]}, s{sT[1]}")
    a(f"s_add_u32 s{sT[0]}, s{sT[0]}, {WS_KV}")
    a(f"s_mov_b32 s{sSEL}, 0x07060302")
    a(f"s_mov_b32 s{sMODE}, 0")
    a(f"v_mov_b32 v{vMX}, 0xff800000")
    a(f"v_mov_b32 v{vT[0]}, {FLAG}")
    a(f"v_mov_b32 v{vT[1]}, 0")
    a(f"ds_write_b32 v{vT[0]}, v{vT[1]}")
    a("s_waitcnt lgkmcnt(0)")
    srd(a, SWS, 4, WS_SIZE)
    a(f"s_add_u32 s{SKV}, s4, s{sT[0]}")
    a(f"s_addc_u32 s{SKV+1}, s5, 0")
    a(f"s_and_b32 s{SKV+1}, s{SKV+1}, 0xffff")
    a(f"s_mov_b32 s{SKV+2}, 131072")
    a(f"s_mov_b32 s{SKV+3}, 0x20000")
    a(f"buffer_load_dwordx4 {vr(Q,4)}, v{vA0}, s[{SWS}:{SWS+3}], s{sQOFF} offen")
    a(f"buffer_load_dwordx4 {vr(Q+4,4)}, v{vA1}, s[{SWS}:{SWS+3}], s{sQOFF} offen")
    a.label("L2_main")
    a(f"buffer_load_dwordx4 {vr(KF,4)}, v{vA0}, s[{SKV}:{SKV+3}], 0 offen")
    a(f"buffer_load_dwordx4 {vr(KF+4,4)}, v{vA1}, s[{SKV}:{SKV+3}], 0 offen")
    a(f"s_movk_i32 s{sT[0]}, 4096")
    a(f"buffer_load_dwordx4 {vr(KF+8,4)}, v{vA0}, s[{SKV}:{SKV+3}], s{sT[0]} offen")
    a(f"buffer_load_dwordx4 {vr(KF+12,4)}, v{vA1}, s[{SKV}:{SKV+3}], s{sT[0]} offen")
    a(f"s_mov_b32 s{sDOFF}, 0")
    def dma(slot):
        a(f"s_add_u32 m0, s{sM0}, {slot*16384}")
        a("s_nop 0")
        a(f"buffer_load_dwordx4 v{vD}, s[{SKV}:{SKV+3}], s{sDOFF} offen lds")
        a(f"buffer_load_dwordx4 v{vD}, s[{SKV}:{SKV+3}], s{sDOFF} offen offset:1024 lds")
        a(f"s_add_u32 s{sDOFF}, s{sDOFF}, 8192")
    for st in range(3):
        dma(st)
    for i in range(16):
        a(f"v_mov_b32 v{O+i}, 0")
    for i in range(8):
        a(f"v_mov_b32 v{P+8+i}, 0")
        a(f"v_mov_b32 v{VF+8+i}, 0")
    a("s_waitcnt vmcnt(8)")
    a(f"v_mfma_f32_32x32x16_bf16 {vr(S,16)}, {vr(KF,4)}, {vr(Q,4)}, 0")
    a(f"v_mfma_f32_32x32x16_bf16 {vr(S,16)}, {vr(KF+4,4)}, {vr(Q+4,4)}, {vr(S,16)}")
    a("s_nop 15")
    for i in range(8):
        a(f"v_max3_f32 v{vMX}, v{S+2*i}, v{S+2*i+1}, v{vMX}")
    a(f"v_mov_b32 v{vT[0]}, v{vMX}")
    a(f"v_mov_b32 v{vT[1]}, v{vMX}")
    a("s_nop 1")
    a(f"v_permlane32_swap_b32 v{vT[0]}, v{vT[1]}")
    a(f"v_max_f32 v{vMX}, v{vT[0]}, v{vT[1]}")
    for i in range(16):
        a(f"v_sub_f32 v{NM+i}, 0, v{vMX}")
    a("s_nop 1")
    a(f"v_mfma_f32_32x32x16_bf16 {vr(S,16)}, {vr(KF,4)}, {vr(Q,4)}, {vr(NM,16)}")
    a(f"v_mfma_f32_32x32x16_bf16 {vr(S,16)}, {vr(KF+4,4)}, {vr(Q+4,4)}, {vr(S,16)}")
    a(f"s_mov_b32 s{sCNT}, 4")
    a("s_nop 7")
    a.label("L2_loop")
    def slot(u, ti):
        A, B = ti, 1 - ti
        kofs = ((u + 1) & 3) * 16384 + ti * 4096
        vofs = u * 16384 + ti * 4096 + 2048
        Sa, Sb = S + 16 * A, S + 16 * B
        Pa, Pb = P + 8 * A, P + 8 * B
        a(f"ds_read_b128 {vr(KF+8*A,4)}, v{vL0} offset:{kofs}")
        a(f"ds_read_b128 {vr(KF+8*A+4,4)}, v{vL1} offset:{kofs}")
        a(f"ds_read_b128 {vr(VF+8*A,4)}, v{vL0} offset:{vofs}")
        a(f"ds_read_b128 {vr(VF+8*A+4,4)}, v{vL1} offset:{vofs}")
        mf = [
            f"v_mfma_f32_32x32x16_bf16 {vr(Sb,16)}, {vr(KF+8*B,4)}, {vr(Q,4)}, {vr(NM,16)}",
            f"v_mfma_f32_32x32x16_bf16 {vr(Sb,16)}, {vr(KF+8*B+4,4)}, {vr(Q+4,4)}, {vr(Sb,16)}",
            f"v_mfma_f32_32x32x16_bf16 {vr(O,16)}, {vr(VF+8*B,4)}, {vr(Pb,4)}, {vr(O,16)}",
            f"v_mfma_f32_32x32x16_bf16 {vr(O,16)}, {vr(VF+8*B+4,4)}, {vr(Pb+4,4)}, {vr(O,16)}",
        ]
        def perm(j):
            a(f"v_perm_b32 v{Pa+j}, v{Sa+2*j+1}, v{Sa+2*j}, s{sSEL}")
        for q in range(4):
            a(mf[q])
            for i in range(4):
                a(f"v_exp_f32 v{Sa+4*q+i}, v{Sa+4*q+i}")
            if q >= 1:
                perm(2 * (q - 1)); perm(2 * (q - 1) + 1)
        perm(6); perm(7)
    for u in range(4):
        a("s_waitcnt vmcnt(2) lgkmcnt(0)")
        a("s_barrier")
        dma((u + 3) & 3)
        slot(u, 0)
        a("s_waitcnt lgkmcnt(0)")
        slot(u, 1)
    a(f"s_sub_u32 s{sCNT}, s{sCNT}, 1")
    a(f"s_cmp_lg_u32 s{sCNT}, 0")
    a("s_cbranch_scc1 L2_loop")
    a("s_waitcnt lgkmcnt(0)")
    a(f"v_mfma_f32_32x32x16_bf16 {vr(O,16)}, {vr(VF+8,4)}, {vr(P+8,4)}, {vr(O,16)}")
    a(f"v_mfma_f32_32x32x16_bf16 {vr(O,16)}, {vr(VF+12,4)}, {vr(P+12,4)}, {vr(O,16)}")
    a(f"s_mul_i32 s{sT[0]}, s{sQS}, {CMB_W}")
    a(f"s_add_u32 s{sT[0]}, s{sT[0]}, {CMB}")
    a(f"v_lshlrev_b32 v{vT[0]}, 4, v{vLANE}")
    a(f"v_add_u32 v{vT[0]}, s{sT[0]}, v{vT[0]}")
    a(f"v_lshlrev_b32 v{vT[1]}, 2, v{vLANE}")
    a(f"v_add_u32 v{vT[1]}, s{sT[0]}, v{vT[1]}")
    a(f"v_mov_b32 v{vT[4]}, {FLAG}")
    a(f"v_mov_b32 v{vT[5]}, 1")
    a("s_nop 9")
    a(f"v_mov_b32 v{vT[3]}, 0x53800000")
    a(f"v_cmp_nlt_f32 vcc, abs(v{O}), v{vT[3]}")
    a(f"s_mov_b64 s[36:37], vcc")
    for i in range(1, 16):
        a(f"v_cmp_nlt_f32 vcc, abs(v{O+i}), v{vT[3]}")
        a(f"s_or_b64 s[36:37], s[36:37], vcc")
    a(f"s_cmp_eq_u64 s[36:37], 0")
    a("s_cbranch_scc1 L2_ok")
    a(f"ds_write_b32 v{vT[4]}, v{vT[5]}")
    a.label("L2_ok")
    a(f"s_cmp_eq_u32 s{sKH}, 0")
    a("s_cbranch_scc1 L2_nowr")
    for j in range(4):
        a(f"ds_write_b128 v{vT[0]}, {vr(O+4*j,4)} offset:{j*1024}")
    a(f"ds_write_b32 v{vT[1]}, v{vMX} offset:4096")
    a.label("L2_nowr")
    a("s_waitcnt lgkmcnt(0)")
    a("s_barrier")
    a(f"ds_read_b32 v{vT[5]}, v{vT[4]}")
    for j in range(4):
        a(f"ds_read_b128 {vr(S+4*j,4)}, v{vT[0]} offset:{j*1024}")
    a(f"ds_read_b32 v{vT[2]}, v{vT[1]} offset:4096")
    a("s_waitcnt lgkmcnt(0)")
    a(f"v_readfirstlane_b32 s{sT[0]}, v{vT[5]}")
    a(f"s_cmp_eq_u32 s{sMODE}, 0")
    a(f"s_cselect_b32 s{sT[0]}, s{sT[0]}, 0")
    a(f"s_cmp_lg_u32 s{sT[0]}, 0")
    a("s_cbranch_scc1 L2_fallback")
    a(f"s_cmp_lg_u32 s{sKH}, 0")
    a("s_cbranch_scc1 L2_end")
    a(f"v_max_f32 v{vT[3]}, v{vMX}, v{vT[2]}")
    a(f"v_sub_f32 v{vT[4]}, v{vMX}, v{vT[3]}")
    a(f"v_sub_f32 v{vT[5]}, v{vT[2]}, v{vT[3]}")
    a(f"v_exp_f32 v{vT[4]}, v{vT[4]}")
    a(f"v_exp_f32 v{vT[5]}, v{vT[5]}")
    a("s_nop 0")
    for i in range(16):
        a(f"v_mul_f32 v{O+i}, v{vT[4]}, v{O+i}")
        a(f"v_fmac_f32 v{O+i}, v{vT[5]}, v{S+i}")
    a(f"v_mov_b32 v{vT[6]}, v{O+12}")
    a(f"v_mov_b32 v{vT[7]}, v{O+12}")
    a("s_nop 1")
    a(f"v_permlane32_swap_b32 v{vT[6]}, v{vT[7]}")
    a(f"v_rcp_f32 v{vT[7]}, v{vT[7]}")
    a(f"s_lshl_b32 s{sT[0]}, s{sQB}, 7")
    a(f"s_lshl_b32 s{sT[1]}, s{sQS}, 5")
    a(f"s_add_u32 s{sT[0]}, s{sT[0]}, s{sT[1]}")
    a(f"s_mul_i32 s{sT[0]}, s{sT[0]}, 896")
    a(f"s_mul_i32 s{sT[1]}, s{sHEAD}, 56")
    a(f"s_add_u32 s{sT[0]}, s{sT[0]}, s{sT[1]}")
    a(f"s_add_u32 s{sT[0]}, s{sT[0]}, {WS_O}")
    a(f"v_and_b32 v{vT[0]}, 31, v{vLANE}")
    a(f"v_mul_u32_u24 v{vT[0]}, 896, v{vT[0]}")
    a(f"v_lshrrev_b32 v{vT[1]}, 5, v{vLANE}")
    a(f"v_lshl_add_u32 v{vT[0]}, v{vT[1]}, 3, v{vT[0]}")
    for i in range(16):
        a(f"v_mul_f32 v{O+i}, v{vT[7]}, v{O+i}")
    for j in range(4):
        a(f"v_cvt_pk_bf16_f32 v{S+2*j}, v{O+4*j}, v{O+4*j+1}")
        a(f"v_cvt_pk_bf16_f32 v{S+2*j+1}, v{O+4*j+2}, v{O+4*j+3}")
    for j in range(3):
        a(f"buffer_store_dwordx2 {vr(S+2*j,2)}, v{vT[0]}, s[{SWS}:{SWS+3}], s{sT[0]} offen offset:{16*j}")
    a("s_mov_b32 exec_hi, 0")
    a(f"buffer_store_dwordx2 {vr(S+6,2)}, v{vT[0]}, s[{SWS}:{SWS+3}], s{sT[0]} offen offset:48")
    a("s_endpgm")
    a.label("L2_fallback")
    a(f"s_mov_b32 s{sMODE}, 1")
    a("s_waitcnt vmcnt(0)")
    a("s_barrier")
    a(f"s_mov_b32 s{sT[0]}, 0")
    a.label("L2_maxloop")
    a(f"buffer_load_dwordx4 {vr(KF,4)}, v{vA0}, s[{SKV}:{SKV+3}], s{sT[0]} offen")
    a(f"buffer_load_dwordx4 {vr(KF+4,4)}, v{vA1}, s[{SKV}:{SKV+3}], s{sT[0]} offen")
    a("s_waitcnt vmcnt(0)")
    a(f"v_mfma_f32_32x32x16_bf16 {vr(S,16)}, {vr(KF,4)}, {vr(Q,4)}, 0")
    a(f"v_mfma_f32_32x32x16_bf16 {vr(S,16)}, {vr(KF+4,4)}, {vr(Q+4,4)}, {vr(S,16)}")
    a("s_nop 15")
    for i in range(8):
        a(f"v_max3_f32 v{vMX}, v{S+2*i}, v{S+2*i+1}, v{vMX}")
    a(f"s_add_u32 s{sT[0]}, s{sT[0]}, 4096")
    a(f"s_cmp_lt_u32 s{sT[0]}, 131072")
    a("s_cbranch_scc1 L2_maxloop")
    a("s_branch L2_main")

    a.label("L2_fft")
    a("s_cmp_ge_u32 s2, 225")
    a("s_cbranch_scc1 L2_end")
    DB = 16
    AC = 32
    M1 = 64
    FM = 88
    TW = 112
    WW = 144
    sP, sK = 36, 37
    vTB, vX, vWo, vZ = 2, 3, 4, 5
    a(f"s_sub_u32 s{sP}, s{sW}, 8")
    a("s_getpc_b64 s[6:7]")
    a("s_add_u32 s6, s6, ffttab@rel32@lo+4")
    a("s_addc_u32 s7, s7, ffttab@rel32@hi+12")
    srd(a, STB, 6, TAB_BYTES)
    a(f"v_lshlrev_b32 v{vTB}, 4, v{vLANE}")
    a(f"v_and_b32 v{vT[0]}, 31, v{vLANE}")
    a(f"v_lshrrev_b32 v{vT[1]}, 5, v{vLANE}")
    a(f"v_lshlrev_b32 v{vT[1]}, 5, v{vT[1]}")
    a(f"v_lshl_add_u32 v{vX}, v{vT[0]}, 6, v{vT[1]}")
    a(f"v_lshlrev_b32 v{vWo}, 6, v{vLANE}")
    a(f"v_lshlrev_b32 v{vZ}, 5, v{vLANE}")
    a(f"s_mul_i32 s{sT[0]}, s{sP}, 448")
    a(f"s_add_u32 s{sT[0]}, s{sT[0]}, s2")
    a(f"s_lshl_b32 s{sT[0]}, s{sT[0]}, 11")
    a(f"s_add_u32 s{sT[1]}, s{sT[0]}, {WS_X1}")
    a(f"s_add_u32 s{sT[2]}, s{sT[0]}, {WS_X1 + 224*2048}")
    a(f"s_add_u32 s38, s{sT[0]}, {WS_Z}")
    a(f"s_add_u32 s39, s{sT[0]}, {WS_Z + 224*2048}")
    a(f"s_lshl_b32 s{sT[3]}, s2, 1")
    a(f"s_add_u32 s{sT[3]}, s{sT[3]}, s{sP}")
    a(f"s_lshl_b32 s{sT[3]}, s{sT[3]}, 12")
    a(f"s_add_u32 s{sT[3]}, s{sT[3]}, {WS_WT}")
    a(f"s_mul_i32 s{sT[4]}, s{sP}, {28*1024}")
    a(f"s_add_u32 s{sT[4]}, s{sT[4]}, {6*1024}")
    a(f"s_cmp_eq_u32 s2, 0")
    a(f"s_cselect_b32 s{sK}, 1, 0")
    a(f"s_cmp_eq_u32 s2, 224")
    a(f"s_cselect_b32 s{sK}, 1, s{sK}")
    a("s_waitcnt lgkmcnt(0)")
    srd(a, SWS, 4, WS_SIZE)
    a(f"buffer_load_dwordx4 {vr(DB,4)}, v{vX}, s[{SWS}:{SWS+3}], s{sT[1]} offen")
    a(f"buffer_load_dwordx4 {vr(DB+4,4)}, v{vX}, s[{SWS}:{SWS+3}], s{sT[1]} offen offset:16")
    a(f"buffer_load_dwordx4 {vr(DB+8,4)}, v{vX}, s[{SWS}:{SWS+3}], s{sT[2]} offen")
    a(f"buffer_load_dwordx4 {vr(DB+12,4)}, v{vX}, s[{SWS}:{SWS+3}], s{sT[2]} offen offset:16")
    def tload(dst, quad, n, parity=True):
        for q in range(n):
            off = (quad + q) * 1024
            if parity:
                a(f"s_add_u32 s40, s{sT[4]}, {off}")
            else:
                a(f"s_mov_b32 s40, {off}")
            a(f"buffer_load_dwordx4 {vr(dst+4*q,4)}, v{vTB}, s[{STB}:{STB+3}], s40 offen")
    tload(M1, 0, 6)
    tload(TW, 6, 8)
    tload(FM, 0, 6, False)
    for q in range(4):
        a(f"buffer_load_dwordx4 {vr(WW+4*q,4)}, v{vWo}, s[{SWS}:{SWS+3}], s{sT[3]} offen offset:{16*q}")
    a("s_barrier")
    a("s_waitcnt vmcnt(18)")
    a(f"s_cmp_eq_u32 s{sK}, 0")
    a("s_cbranch_scc1 L2_f1")
    for i in range(8):
        a(f"v_mov_b32 v{DB+8+i}, 0")
    a.label("L2_f1")
    a("s_nop 1")
    def stage(data_is_A, Mr, Mi, Mni):
        def mm(dst, d, m, first):
            for t in range(2):
                D_, M_ = vr(d + 4 * t, 4), vr(m + 4 * t, 4)
                A_, B_ = (D_, M_) if data_is_A else (M_, D_)
                C_ = "0" if (first and t == 0) else vr(dst, 16)
                a(f"v_mfma_f32_32x32x16_bf16 {vr(dst,16)}, {A_}, {B_}, {C_}")
        mm(AC, DB, Mr, True)
        mm(AC + 16, DB, Mi, True)
        mm(AC, DB + 8, Mni, False)
        mm(AC + 16, DB + 8, Mr, False)
        a("s_nop 15")
    def cmul_pack(getc, gets, pre=None):
        for r in range(0, 16, 2):
            for k in range(2):
                rr = r + k
                if pre: pre(rr, k)
                c, s = getc(rr, k), gets(rr, k)
                xr, xi = AC + rr, AC + 16 + rr
                a(f"v_mul_f32 v{vT[0+k]}, v{xi}, {s}")
                a(f"v_mul_f32 v{vT[2+k]}, v{xi}, {c}")
                a(f"v_fma_f32 v{vT[0+k]}, v{xr}, {c}, -v{vT[0+k]}")
                a(f"v_fma_f32 v{vT[2+k]}, v{xr}, {s}, v{vT[2+k]}")
            a(f"v_cvt_pk_bf16_f32 v{DB+r//2}, v{vT[0]}, v{vT[1]}")
            a(f"v_cvt_pk_bf16_f32 v{DB+8+r//2}, v{vT[2]}, v{vT[3]}")
        a("s_nop 1")
    stage(True, M1, M1 + 8, M1 + 16)
    a("s_waitcnt vmcnt(10)")
    cmul_pack(lambda r, k: f"v{TW+r}", lambda r, k: f"v{TW+16+r}")
    tload(TW, 14, 8)
    tload(M1, 22, 6)
    a("s_barrier")
    a("s_waitcnt vmcnt(18)")
    stage(False, FM, FM + 8, FM + 16)
    a("s_waitcnt vmcnt(14)")
    def wpre(r, k):
        a(f"v_lshlrev_b32 v{vT[4+k]}, 16, v{WW+r}")
        a(f"v_and_b32 v{vT[6+k]}, 0xffff0000, v{WW+r}")
    cmul_pack(lambda r, k: f"v{vT[4+k]}", lambda r, k: f"v{vT[6+k]}", wpre)
    a("s_barrier")
    stage(True, FM, FM + 16, FM + 8)
    a("s_waitcnt vmcnt(6)")
    cmul_pack(lambda r, k: f"v{TW+r}", lambda r, k: f"v{TW+16+r}")
    a("s_barrier")
    a("s_waitcnt vmcnt(0)")
    stage(True, M1, M1 + 8, M1 + 16)
    a(f"s_cmp_eq_u32 s{sK}, 0")
    a("s_cbranch_scc1 L2_f2")
    for i in range(16):
        a(f"v_mul_f32 v{AC+i}, 0.5, v{AC+i}")
    a.label("L2_f2")
    for j in range(8):
        a(f"v_cvt_pk_bf16_f32 v{DB+j}, v{AC+2*j}, v{AC+2*j+1}")
        a(f"v_cvt_pk_bf16_f32 v{DB+8+j}, v{AC+16+2*j}, v{AC+16+2*j+1}")
    a(f"buffer_store_dwordx4 {vr(DB,4)}, v{vZ}, s[{SWS}:{SWS+3}], s38 offen")
    a(f"buffer_store_dwordx4 {vr(DB+4,4)}, v{vZ}, s[{SWS}:{SWS+3}], s38 offen offset:16")
    a(f"s_cmp_lg_u32 s{sK}, 0")
    a("s_cbranch_scc1 L2_end")
    a(f"buffer_store_dwordx4 {vr(DB+8,4)}, v{vZ}, s[{SWS}:{SWS+3}], s39 offen")
    a(f"buffer_store_dwordx4 {vr(DB+12,4)}, v{vZ}, s[{SWS}:{SWS+3}], s39 offen offset:16")
    a.label("L2_end")
    a("s_endpgm")
    return kdesc(name, 160, 48, 160), f"; @launch kernel={name} grid=(256,1,1) block=(640,1,1) lds={K2_LDS}"
```

```python
from common import *

K3_LDS = 2 * 448 * 128

def gen_k3(a):
    name = "gemm3_kernel"
    khead(a, name)
    PF = 32
    ACC = 144
    QF = 176
    pf = lambda t, ks: PF + (t * 14 + ks) * 4
    acc = lambda t, q: ACC + (t * 4 + q) * 4
    qf = lambda b, q: QF + (b * 4 + q) * 4
    vLANE, vM, vG = 1, 2, 3
    vT = [4, 5, 6, 7, 8, 9, 10, 11]
    vPO = [12, 13]
    vDO = 14
    vTR = [16, 17, 18, 19]
    vST = [20, 21, 22, 23]
    SP, SQ, SO = 24, 28, 32
    sW, sX, sI, sA, sB = 20, 21, 22, 23, 36
    sT = [37, 38, 39, 40, 41, 42]
    sSOFF, sM0, sPITCH = 43, 44, 45
    a("s_cmp_ge_u32 s2, 224")
    a("s_cbranch_scc1 L3_end")
    a("s_load_dwordx2 s[4:5], s[0:1], 16")
    a("s_load_dwordx2 s[6:7], s[0:1], 48")
    a("s_load_dwordx2 s[8:9], s[0:1], 64")
    a("s_getpc_b64 s[10:11]")
    a("s_add_u32 s10, s10, ftab@rel32@lo+4")
    a("s_addc_u32 s11, s11, ftab@rel32@hi+12")
    a(f"v_lshrrev_b32 v{vT[0]}, 6, v0")
    a(f"v_and_b32 v{vLANE}, 63, v0")
    a(f"v_readfirstlane_b32 s{sW}, v{vT[0]}")
    a(f"v_and_b32 v{vM}, 15, v0")
    a(f"v_lshrrev_b32 v{vG}, 4, v{vLANE}")
    a(f"s_and_b32 s{sX}, s2, 7")
    a(f"s_lshr_b32 s{sI}, s2, 3")
    a(f"s_and_b32 s{sA}, s{sX}, 3")
    a(f"s_lshl_b32 s{sA}, s{sA}, 2")
    a(f"s_and_b32 s{sT[0]}, s{sI}, 3")
    a(f"s_add_u32 s{sA}, s{sA}, s{sT[0]}")
    a(f"s_lshr_b32 s{sB}, s{sI}, 2")
    a(f"v_lshrrev_b32 v{vT[0]}, 3, v{vLANE}")
    a(f"v_and_b32 v{vT[1]}, 3, v{vT[0]}")
    a(f"v_lshrrev_b32 v{vT[2]}, 2, v{vT[0]}")
    a(f"v_lshl_add_u32 v{vT[1]}, v{vT[2]}, 3, v{vT[1]}")
    a(f"v_and_b32 v{vT[2]}, 6, v{vT[0]}")
    a(f"v_and_b32 v{vT[3]}, 7, v{vLANE}")
    a(f"v_xor_b32 v{vT[2]}, v{vT[2]}, v{vT[3]}")
    a(f"v_lshlrev_b32 v{vT[2]}, 4, v{vT[2]}")
    a(f"v_lshrrev_b32 v{vT[4]}, 1, v{vG}")
    a(f"v_and_b32 v{vT[5]}, 1, v{vG}")
    a(f"v_lshrrev_b32 v{vT[6]}, 2, v{vM}")
    a(f"v_lshl_add_u32 v{vT[7]}, v{vT[5]}, 2, v{vT[6]}")
    a(f"v_lshl_add_u32 v{vT[4]}, v{vT[4]}, 4, v{vT[7]}")
    a(f"v_lshlrev_b32 v{vT[4]}, 7, v{vT[4]}")
    a(f"v_and_b32 v{vT[5]}, 3, v{vM}")
    a(f"v_lshl_add_u32 v{vT[4]}, v{vT[5]}, 3, v{vT[4]}")
    a(f"v_lshrrev_b32 v{vT[7]}, 1, v{vT[7]}")
    a(f"v_lshlrev_b32 v{vT[7]}, 5, v{vT[7]}")
    for i in range(32):
        a(f"v_mov_b32 v{ACC+i}, 0")
    a(f"s_cmp_ge_u32 s{sX}, 4")
    a("s_cbranch_scc1 L3_b")

    def issue(ndma_per_chunk, dma_fn):
        for c in range(7):
            dma_fn(c)
            for ks in (2*c, 2*c+1):
                for t in range(2):
                    a(f"buffer_load_dwordx4 {vr(pf(t,ks),4)}, v{vPO[t]}, s[{SP}:{SP+3}], 0 offen offset:{ks*64}")
    def reads(ks, b):
        for q in range(4):
            for rho in range(2):
                a(f"ds_read_b64_tr_b16 {vr(qf(b,q)+2*rho,2)}, v{vTR[q]} offset:{ks*4096 + rho*1024}")
    def mfmas(ks, b, p_is_A):
        for q in range(4):
            for t in range(2):
                A, B = vr(pf(t, ks), 4), vr(qf(b, q), 4)
                if not p_is_A: A, B = B, A
                a(f"v_mfma_f32_16x16x32_bf16 {vr(acc(t,q),4)}, {A}, {B}, {vr(acc(t,q),4)}")
    def mainloop(per_chunk, p_is_A):
        for c in range(7):
            a(f"s_waitcnt vmcnt({min((6-c)*per_chunk, 63)})")
            a("s_barrier")
            reads(2*c, 0)
            if c > 0:
                a("s_waitcnt lgkmcnt(8)")
                mfmas(2*c-1, 1, p_is_A)
            reads(2*c+1, 1)
            a("s_waitcnt lgkmcnt(8)")
            mfmas(2*c, 0, p_is_A)
        a("s_waitcnt lgkmcnt(0)")
        mfmas(13, 1, p_is_A)

    a(f"v_mul_u32_u24 v{vT[1]}, 896, v{vT[1]}")
    a(f"v_add_u32 v{vDO}, v{vT[1]}, v{vT[2]}")
    for q in range(4):
        a(f"v_xor_b32 v{vT[5]}, {q*32}, v{vT[7]}")
        a(f"v_add_u32 v{vTR[q]}, v{vT[4]}, v{vT[5]}")
    a(f"s_lshl_b32 s{sT[0]}, s{sA}, 7")
    a(f"s_lshl_b32 s{sT[1]}, s{sW}, 5")
    a(f"s_add_u32 s{sT[0]}, s{sT[0]}, s{sT[1]}")
    a(f"v_add_u32 v{vT[5]}, s{sT[0]}, v{vM}")
    a(f"v_mul_u32_u24 v{vT[6]}, 896, v{vT[5]}")
    a(f"v_lshl_add_u32 v{vPO[0]}, v{vG}, 4, v{vT[6]}")
    a(f"v_add_u32 v{vPO[1]}, {16*896}, v{vPO[0]}")
    a(f"v_mul_u32_u24 v{vT[6]}, 1792, v{vT[5]}")
    a(f"v_lshl_add_u32 v{vT[6]}, v{vG}, 3, v{vT[6]}")
    a(f"s_lshl_b32 s{sT[1]}, s{sB}, 7")
    a(f"v_add_u32 v{vST[0]}, s{sT[1]}, v{vT[6]}")
    a(f"v_add_u32 v{vST[1]}, {16*1792}, v{vST[0]}")
    a(f"s_mul_i32 s{sSOFF}, s{sW}, {16*896}")
    a(f"s_add_u32 s{sSOFF}, s{sSOFF}, s{sT[1]}")
    a(f"s_lshl_b32 s{sM0}, s{sW}, 11")
    a("s_waitcnt lgkmcnt(0)")
    a(f"s_add_u32 s{SP}, s8, {WS_O}")
    a(f"s_addc_u32 s{SP+1}, s9, 0")
    a(f"s_and_b32 s{SP+1}, s{SP+1}, 0xffff")
    a(f"s_mov_b32 s{SP+2}, {2048*896}")
    a(f"s_mov_b32 s{SP+3}, 0x20000")
    srd(a, SQ, 4, 448 * 896)
    srd(a, SO, 6, 2048 * 1792)
    def dmaA(c):
        for j in range(2):
            a(f"s_add_u32 m0, s{sM0}, {c*8192 + j*1024}")
            a(f"s_add_u32 s{sT[2]}, s{sSOFF}, {(64*c + 4*j)*896}")
            a(f"buffer_load_dwordx4 v{vDO}, s[{SQ}:{SQ+3}], s{sT[2]} offen lds")
    issue(2, dmaA)
    mainloop(6, False)
    a("s_nop 7")
    for q in range(4):
        for t in range(2):
            r = acc(t, q)
            a(f"v_cvt_pk_bf16_f32 v{r}, v{r}, v{r+1}")
            a(f"v_cvt_pk_bf16_f32 v{r+1}, v{r+2}, v{r+3}")
            a(f"buffer_store_dwordx2 {vr(r,2)}, v{vST[t]}, s[{SO}:{SO+3}], 0 offen offset:{q*32}")
    a("s_endpgm")

    a.label("L3_b")
    a(f"v_lshlrev_b32 v{vT[1]}, 11, v{vT[1]}")
    a(f"v_add_u32 v{vDO}, v{vT[1]}, v{vT[2]}")
    a(f"s_lshr_b32 s{sT[3]}, s{sW}, 1")
    a(f"s_and_b32 s{sT[4]}, s{sW}, 1")
    a(f"s_lshl_b32 s{sT[0]}, s{sT[3]}, 6")
    for q in range(4):
        p, ntl = q >> 1, q & 1
        a(f"s_add_u32 s{sT[1]}, s{sT[0]}, {ntl*32}")
        a(f"v_xor_b32 v{vT[5]}, s{sT[1]}, v{vT[7]}")
        a(f"v_add_u32 v{vT[5]}, v{vT[4]}, v{vT[5]}")
        a(f"v_add_u32 v{vTR[q]}, {p*57344}, v{vT[5]}")
    a(f"s_lshl_b32 s{sT[0]}, s{sB}, 6")
    a(f"s_lshl_b32 s{sT[1]}, s{sT[4]}, 5")
    a(f"s_add_u32 s{sT[0]}, s{sT[0]}, s{sT[1]}")
    a(f"v_lshrrev_b32 v{vT[5]}, 2, v{vM}")
    a(f"v_and_b32 v{vT[6]}, 3, v{vM}")
    a(f"v_lshl_add_u32 v{vT[5]}, v{vT[5]}, 3, v{vT[6]}")
    a(f"v_add_u32 v{vT[5]}, s{sT[0]}, v{vT[5]}")
    a(f"v_mul_u32_u24 v{vT[5]}, 896, v{vT[5]}")
    a(f"v_lshl_add_u32 v{vPO[0]}, v{vG}, 4, v{vT[5]}")
    a(f"v_add_u32 v{vPO[1]}, {4*896}, v{vPO[0]}")
    a(f"s_lshl_b32 s{sT[1]}, s{sA}, 2")
    a(f"s_lshl_b32 s{sT[2]}, s{sT[3]}, 1")
    a(f"s_add_u32 s{sT[1]}, s{sT[1]}, s{sT[2]}")
    a(f"s_lshr_b32 s{sT[2]}, s{sT[1]}, 5")
    a(f"s_and_b32 s{sT[1]}, s{sT[1]}, 31")
    a(f"s_lshl_b32 s{sT[1]}, s{sT[1]}, 5")
    a(f"s_lshl_b32 s{sT[2]}, s{sT[2]}, 2")
    a(f"s_add_u32 s{sT[1]}, s{sT[1]}, s{sT[2]}")
    a(f"v_lshrrev_b32 v{vT[5]}, 2, v{vM}")
    a(f"v_lshl_add_u32 v{vT[5]}, v{vT[5]}, 3, v{vT[6]}")
    a(f"v_add_u32 v{vT[5]}, s{sT[1]}, v{vT[5]}")
    a(f"v_mul_u32_u24 v{vT[5]}, 1792, v{vT[5]}")
    a(f"v_lshl_add_u32 v{vT[5]}, v{vG}, 4, v{vT[5]}")
    a(f"s_lshl_b32 s{sT[0]}, s{sT[0]}, 1")
    a(f"s_add_u32 s{sT[0]}, s{sT[0]}, 896")
    a(f"v_add_u32 v{vST[0]}, s{sT[0]}, v{vT[5]}")
    a(f"v_add_u32 v{vST[1]}, {32*1792}, v{vST[0]}")
    a(f"v_add_u32 v{vST[2]}, {1024*1792}, v{vST[0]}")
    a(f"v_add_u32 v{vST[3]}, {1024*1792}, v{vST[1]}")
    a(f"s_lshl_b32 s{sSOFF}, s{sW}, 15")
    a(f"s_lshl_b32 s{sT[1]}, s{sA}, 7")
    a(f"s_add_u32 s{sSOFF}, s{sSOFF}, s{sT[1]}")
    a(f"s_lshl_b32 s{sM0}, s{sW}, 11")
    a("s_waitcnt lgkmcnt(0)")
    srd(a, SP, 10, 448 * 896)
    a(f"s_add_u32 s{SQ}, s8, {WS_Z}")
    a(f"s_addc_u32 s{SQ+1}, s9, 0")
    a(f"s_and_b32 s{SQ+1}, s{SQ+1}, 0xffff")
    a(f"s_mov_b32 s{SQ+2}, {2*448*2048}")
    a(f"s_mov_b32 s{SQ+3}, 0x20000")
    srd(a, SO, 6, 2048 * 1792)
    def dmaB(c):
        for p in range(2):
            for j in range(2):
                a(f"s_add_u32 m0, s{sM0}, {p*57344 + c*8192 + j*1024}")
                a(f"s_add_u32 s{sT[2]}, s{sSOFF}, {(p*448 + 64*c + 4*j)*2048}")
                a(f"buffer_load_dwordx4 v{vDO}, s[{SQ}:{SQ+3}], s{sT[2]} offen lds")
    issue(4, dmaB)
    mainloop(8, True)
    a("s_nop 7")
    for ntl in range(2):
        for t in range(2):
            r0, r1 = acc(t, ntl), acc(t, 2 + ntl)
            w0 = qf(0, 0) + 4 * t
            for i in range(4):
                a(f"v_add_f32 v{w0+i}, v{r0+i}, v{r1+i}")
                a(f"v_sub_f32 v{r1+i}, v{r0+i}, v{r1+i}")
        d0 = PF + 8 * ntl
        d1 = PF + 8 * ntl + 4
        for t in range(2):
            w0 = qf(0, 0) + 4 * t
            r1 = acc(t, 2 + ntl)
            a(f"v_cvt_pk_bf16_f32 v{d0+2*t}, v{w0}, v{w0+1}")
            a(f"v_cvt_pk_bf16_f32 v{d0+2*t+1}, v{w0+2}, v{w0+3}")
            a(f"v_cvt_pk_bf16_f32 v{d1+2*t}, v{r1}, v{r1+1}")
            a(f"v_cvt_pk_bf16_f32 v{d1+2*t+1}, v{r1+2}, v{r1+3}")
        a(f"buffer_store_dwordx4 {vr(d0,4)}, v{vST[ntl]}, s[{SO}:{SO+3}], 0 offen")
        a(f"buffer_store_dwordx4 {vr(d1,4)}, v{vST[2+ntl]}, s[{SO}:{SO+3}], 0 offen")
    a.label("L3_end")
    a("s_endpgm")
    return kdesc(name, 208, 48, 208), f"; @launch kernel={name} grid=(224,1,1) block=(256,1,1) lds={K3_LDS}"
```

```python
import sys
from common import *
from k1 import gen_k1
from k2 import gen_k2, fft_tables
from k3 import gen_k3

HEADER = """; Kernarg layout for this problem (72 bytes, ptrs only, base s[0:1]):
"""

def build(path):
    a = Asm()
    descs, launches = [], []
    for g in (gen_k1, gen_k2, gen_k3):
        d, l = g(a)
        descs.append(d); launches.append(l)
    out = HEADER + "\n".join(launches) + "\n"
    out += '.amdgcn_target "amdgcn-amd-amdhsa--gfx950"\n.text\n'
    out += a.text()
    out += '.section .rodata,"a"\n'
    for d in descs:
        out += ".p2align 6\n" + d
    out += ".p2align 8\nffttab:\n"
    t = fft_tables()
    t64 = t[0::2].astype(np.uint64) | (t[1::2].astype(np.uint64) << np.uint64(32))
    for i in range(0, len(t64), 8):
        out += ".quad " + ",".join(f"{int(x):#x}" for x in t64[i:i+8]) + "\n"
    for j in range(448):
        out += f".set FC{j}, {bf16_bits(np.cos(2*np.pi*j/448)):#x}\n"
    out += """.altmacro
.macro fone a
.short FC\\a
.endm
.p2align 8
ftab:
.set fd, 0
.rept 448
.set fi, 0
.rept 225
fone %fi
.set fi, (fi + fd) % 448
.endr
.set fi, (112 + fd) % 448
.rept 223
fone %fi
.set fi, (fi + fd) % 448
.endr
.set fd, fd+1
.endr
.noaltmacro
"""
    open(path, "w").write(out)

if __name__ == "__main__":
    build(sys.argv[1] if len(sys.argv) > 1 else "concat_heads__mha_block__spectral_gfnet__prompt.s")
```

```python
import numpy as np

def bf16_bits(x):
    u = int(np.float32(x).view(np.uint32))
    return ((u + 0x7fff + ((u >> 16) & 1)) >> 16) & 0xffff

def f32_bits(x):
    return int(np.float32(x).view(np.uint32))

class Asm:
    def __init__(self):
        self.lines = []
    def __call__(self, s):
        for l in s.strip("\n").split("\n"):
            self.lines.append("    " + l.strip())
    def label(self, l):
        self.lines.append(l + ":")
    def raw(self, s):
        self.lines.append(s)
    def text(self):
        return "\n".join(self.lines) + "\n"

def vr(b, n=1):
    return f"v{b}" if n == 1 else f"v[{b}:{b+n-1}]"
def sr(b, n=1):
    return f"s{b}" if n == 1 else f"s[{b}:{b+n-1}]"
def ar(b, n=1):
    return f"a{b}" if n == 1 else f"a[{b}:{b+n-1}]"

MB = 1 << 20
WS_Q = 0
WS_KV = 2 * MB
WS_X1 = 6 * MB
WS_WT = 8 * MB
WS_O = 10 * MB
WS_Z = 12 * MB
WS_SIZE = 14 * MB

def kdesc(name, vgpr, sgpr, accum):
    return f""".amdhsa_kernel {name}
  .amdhsa_next_free_vgpr {vgpr}
  .amdhsa_next_free_sgpr {sgpr}
  .amdhsa_accum_offset {accum}
  .amdhsa_group_segment_fixed_size 0
  .amdhsa_kernarg_size 72
  .amdhsa_user_sgpr_count 2
  .amdhsa_user_sgpr_kernarg_segment_ptr 1
  .amdhsa_system_sgpr_workgroup_id_x 1
.end_amdhsa_kernel
"""

def khead(a, name):
    a.raw(f".globl {name}")
    a.raw(".p2align 8")
    a.raw(f".type {name},@function")
    a.label(name)

def srd(a, d, base, size):
    a(f"s_mov_b32 s{d}, s{base}")
    a(f"s_and_b32 s{d+1}, s{base+1}, 0xffff")
    a(f"s_mov_b32 s{d+2}, {size}")
    a(f"s_mov_b32 s{d+3}, 0x20000")

def csel(a, d, t, f):
    a(f"s_mov_b32 s{d}, {f}")
    a(f"s_cselect_b32 s{d}, {t}, s{d}")

import os
STAMP = os.environ.get("STAMP", "0") == "1"
WS_ST = 14 * MB
WS_SIZE = 16 * MB
STB = 70
def stamp(a, i):
    if STAMP:
        a(f"{'s_memtime' if os.environ.get('CYC') else 's_memrealtime'} s[{STB+2*i}:{STB+2*i+1}]")
def stamp_flush(a, kidx, n, ws_pair, vtmp, wave_sgpr):
    if not STAMP: return
    a("s_waitcnt vmcnt(0)")
    stamp(a, n)
    a("s_waitcnt lgkmcnt(0)")
    a(f"s_lshl_b32 s68, s2, 4")
    a(f"s_add_u32 s68, s68, s{wave_sgpr}")
    a(f"s_lshl_b32 s68, s68, 6")
    a(f"s_add_u32 s68, s68, {WS_ST + kidx*256*16*64}")
    a("s_mov_b64 exec, 1")
    a(f"v_mov_b32 v{vtmp}, s68")
    for i in range(n + 1):
        a(f"v_mov_b32 v{vtmp+1}, s{STB+2*i}")
        a(f"global_store_dword v{vtmp}, v{vtmp+1}, s[{ws_pair}:{ws_pair+1}] offset:{4*i}")
```

```python
from common import *
import math

SLOT = 16384 + 14336
NSLOT = 5
K1_LDS = SLOT * NSLOT
QSCALE = (28 ** -0.5) * math.log2(math.e)

def gen_k1(a):
    name = "gemm1_kernel"
    khead(a, name)
    ACC = 32
    WF = 88
    XF = 144
    SJ = 160
    acc = lambda t, nt: ACC + (t * 7 + nt) * 4
    wf = lambda b, nt: WF + (b * 7 + nt) * 4
    xf = lambda b, t: XF + (b * 2 + t) * 4
    vLANE, vM, vG = 1, 2, 3
    vT = [4, 5, 6, 7, 8, 9, 10, 11]
    vXO = [12, 13, 14, 15]
    vWO = 16
    vTR = [17, 18, 19]
    vXR = [20, 21, 22, 23, 24, 25]
    vK2 = 26
    vWTS = 27
    vE = [28, 29, 30, 31]
    sTYPE, sMT, sNT4, sW = 20, 21, 22, 23
    SX, SW, SWS, SWR, SWI = 24, 28, 32, 36, 40
    sPITCH, sP4, sSOFF, sM0W = 44, 45, 46, 47
    sT = [48, 49, 50, 51, 52, 53]
    sMASKF = 54
    sU = 56
    sP52 = 57
    sSC = 58
    sM0X = 61
    sXK = 62
    sWV = 67

    a("s_cmp_ge_u32 s2, 256")
    a("s_cbranch_scc1 L1_end")
    stamp(a, 0)
    a("s_load_dwordx4 s[4:7], s[0:1], 0")
    a("s_load_dwordx2 s[8:9], s[0:1], 24")
    a("s_load_dwordx4 s[12:15], s[0:1], 32")
    a("s_load_dwordx2 s[10:11], s[0:1], 64")
    a("s_getpc_b64 s[16:17]")
    a("s_add_u32 s16, s16, ftab@rel32@lo+4")
    a("s_addc_u32 s17, s17, ftab@rel32@hi+12")
    a(f"s_and_b32 s{sTYPE}, s2, 7")
    a(f"s_lshr_b32 s{sTYPE}, s{sTYPE}, 1")
    a(f"s_and_b32 s{sMT}, s2, 1")
    a(f"s_lshl_b32 s{sMT}, s{sMT}, 3")
    a(f"s_lshr_b32 s{sT[0]}, s2, 3")
    a(f"s_and_b32 s{sT[0]}, s{sT[0]}, 7")
    a(f"s_add_u32 s{sMT}, s{sMT}, s{sT[0]}")
    a(f"s_lshr_b32 s{sNT4}, s2, 6")
    a(f"v_lshrrev_b32 v{vT[0]}, 6, v0")
    a(f"v_and_b32 v{vLANE}, 63, v0")
    a(f"v_readfirstlane_b32 s{sWV}, v{vT[0]}")
    a(f"v_and_b32 v{vM}, 15, v0")
    a(f"v_lshrrev_b32 v{vG}, 4, v{vLANE}")
    a(f"s_and_b32 s{sW}, s{sWV}, 3")
    a(f"s_lshl_b32 s{sM0X}, s{sW}, 12")
    a(f"s_cmp_lt_u32 s{sWV}, 4")
    a("s_cbranch_scc1 L1_comp")
    a(f"s_cmp_eq_u32 s{sTYPE}, 3")
    a(f"s_cselect_b64 s[{sMASKF}:{sMASKF+1}], -1, 0")
    csel(a, sPITCH, 896, 2688)
    a(f"s_mul_i32 s{sT[0]}, s{sTYPE}, 896")
    a(f"s_cselect_b32 s{sT[0]}, 0, s{sT[0]}")
    a(f"s_mul_i32 s{sT[1]}, s{sNT4}, 224")
    a(f"s_add_u32 s{sT[0]}, s{sT[0]}, s{sT[1]}")
    a(f"s_lshl_b32 s{sP4}, s{sPITCH}, 2")
    a(f"s_mul_i32 s{sP52}, s{sPITCH}, 52")
    a(f"s_mul_i32 s{sT[1]}, s{sW}, s{sPITCH}")
    a(f"s_lshl_b32 s{sT[1]}, s{sT[1]}, 4")
    a(f"s_add_u32 s{sSOFF}, s{sT[0]}, s{sT[1]}")
    a(f"s_mul_i32 s{sM0W}, s{sW}, {4*896}")
    a(f"s_add_u32 s{sM0W}, s{sM0W}, 16384")
    a(f"s_lshl_b32 s{sM0X}, s{sW}, 12")
    a(f"s_and_b32 s{sT[0]}, s{sMT}, 7")
    a(f"s_lshl_b32 s{sT[1]}, s{sNT4}, 1")
    a(f"s_add_u32 s{sT[0]}, s{sT[0]}, s{sT[1]}")
    a(f"s_sub_u32 s{sT[1]}, s{sT[0]}, 7")
    a(f"s_cmp_ge_u32 s{sT[0]}, 7")
    a(f"s_cselect_b32 s{sT[0]}, s{sT[1]}, s{sT[0]}")
    if 'norot' in os.environ.get('K1EXP', ''): a(f"s_mov_b32 s{sT[0]}, 0")
    a(f"s_lshl_b32 s{sXK}, s{sT[0]}, 7")
    a(f"s_mul_i32 s{sT[0]}, s{sT[0]}, s{sPITCH}")
    a(f"s_lshl_b32 s{sT[0]}, s{sT[0]}, 6")
    a(f"s_add_u32 s{sSOFF}, s{sSOFF}, s{sT[0]}")
    a(f"s_mul_i32 s63, s{sPITCH}, 448")
    a(f"s_lshl_b32 s{sT[0]}, s{sMT}, 7")
    a(f"s_lshl_b32 s{sT[1]}, s{sW}, 5")
    a(f"s_add_u32 s{sT[0]}, s{sT[0]}, s{sT[1]}")
    a(f"s_and_b32 s{sT[1]}, s{sMT}, 3")
    a(f"s_lshl_b32 s{sT[1]}, s{sT[1]}, 8")
    a(f"s_lshr_b32 s{sT[2]}, s{sMT}, 2")
    a(f"s_lshl_b32 s{sT[2]}, s{sT[2]}, 3")
    a(f"s_add_u32 s{sT[1]}, s{sT[1]}, s{sT[2]}")
    a(f"s_lshl_b32 s{sT[2]}, s{sW}, 1")
    a(f"s_add_u32 s{sT[1]}, s{sT[1]}, s{sT[2]}")
    a(f"s_cmp_eq_u32 s{sTYPE}, 3")
    a(f"s_cselect_b32 s{sT[0]}, s{sT[1]}, s{sT[0]}")
    csel(a, sT[1], 1024 * 896, 8 * 896)
    csel(a, sT[2], 896, 16 * 896)
    a(f"v_lshrrev_b32 v{vT[0]}, 3, v{vLANE}")
    a(f"v_lshlrev_b32 v{vT[1]}, 5, v{vT[0]}")
    a(f"v_cndmask_b32 v{vT[1]}, v{vT[0]}, v{vT[1]}, s[{sMASKF}:{sMASKF+1}]")
    a(f"v_add_u32 v{vT[1]}, s{sT[0]}, v{vT[1]}")
    a(f"v_mul_u32_u24 v{vT[1]}, 896, v{vT[1]}")
    a(f"v_and_b32 v{vT[2]}, 7, v{vLANE}")
    a(f"v_lshrrev_b32 v{vT[3]}, 1, v{vT[0]}")
    a(f"v_xor_b32 v{vT[2]}, v{vT[2]}, v{vT[3]}")
    a(f"v_xor_b32 v{vT[3]}, 4, v{vT[2]}")
    a(f"v_lshl_add_u32 v{vXO[0]}, v{vT[2]}, 4, v{vT[1]}")
    a(f"v_lshl_add_u32 v{vXO[1]}, v{vT[3]}, 4, v{vT[1]}")
    a(f"v_add_u32 v{vXO[1]}, s{sT[2]}, v{vXO[1]}")
    a(f"v_add_u32 v{vXO[2]}, s{sT[1]}, v{vXO[0]}")
    a(f"v_add_u32 v{vXO[3]}, s{sT[1]}, v{vXO[1]}")
    a(f"v_mul_u32_u24 v{vT[3]}, 37, v{vLANE}")
    a(f"v_lshrrev_b32 v{vT[3]}, 9, v{vT[3]}")
    a(f"v_mul_u32_u24 v{vT[4]}, 14, v{vT[3]}")
    a(f"v_sub_u32 v{vT[4]}, v{vLANE}, v{vT[4]}")
    a(f"v_mul_lo_u32 v{vT[3]}, v{vT[3]}, s{sPITCH}")
    a(f"v_lshl_add_u32 v{vWO}, v{vT[4]}, 4, v{vT[3]}")
    a("s_waitcnt lgkmcnt(0)")
    stamp(a, 1)
    a(f"s_cmp_eq_u32 s{sTYPE}, 3")
    a(f"s_cselect_b32 s{SX}, s8, s4")
    a(f"s_cselect_b32 s{SX+1}, s9, s5")
    a(f"s_cselect_b32 s{SW}, s16, s6")
    a(f"s_cselect_b32 s{SW+1}, s17, s7")
    csel(a, SW + 2, 448 * 896, 448 * 2688)
    a(f"s_and_b32 s{SX+1}, s{SX+1}, 0xffff")
    a(f"s_and_b32 s{SW+1}, s{SW+1}, 0xffff")
    a(f"s_mov_b32 s{SX+2}, {2048*896}")
    a(f"s_mov_b32 s{SX+3}, 0x20000")
    a(f"s_mov_b32 s{SW+3}, 0x20000")
    swap = [0, 2, 1, 3]
    def issue_chunk(c):
        sl = (c % NSLOT) * SLOT
        for i in range(4):
            a(f"s_add_u32 m0, s{sM0X}, {sl + i*1024}")
            a("s_nop 0")
            a(f"buffer_load_dwordx4 v{vXO[i]}, s[{SX}:{SX+3}], s{sXK} offen lds")
        a(f"s_add_u32 s{sXK}, s{sXK}, 128")
        a(f"s_cmp_eq_u32 s{sXK}, 896")
        a(f"s_cselect_b32 s{sXK}, 0, s{sXK}")
        a(f"s_cselect_b32 s66, s63, 0")
        a("s_mov_b32 exec_hi, 0x00ffffff")
        for jj in range(4):
            j = swap[jj]
            a(f"s_add_u32 m0, s{sM0W}, {sl + j*896}")
            a("s_nop 0")
            a(f"buffer_load_dwordx4 v{vWO}, s[{SW}:{SW+3}], s{sSOFF} offen lds")
            a(f"s_add_u32 s{sSOFF}, s{sSOFF}, s{sP4 if jj < 3 else sP52}")
        a(f"s_sub_u32 s{sSOFF}, s{sSOFF}, s66")
        a("s_mov_b32 exec_hi, -1")
    def side_loads():
        srd(a, SWS, 10, WS_SIZE)
        srd(a, SWR, 12, 2048 * 450)
        srd(a, SWI, 14, 2048 * 450)
        a(f"s_bfe_u32 s{sT[2]}, s2, 0x40003")
        a(f"s_and_b32 s{sT[3]}, s2, 3")
        a(f"s_bfe_u32 s{sT[4]}, s2, 0x10002")
        a(f"s_bfe_u32 s{sT[5]}, s2, 0x10007")
        a(f"s_lshl_b32 s{sU}, s{sT[2]}, 2")
        a(f"s_add_u32 s{sU}, s{sU}, s{sT[4]}")
        a(f"s_lshl_b32 s59, s{sT[3]}, 9")
        a(f"s_add_u32 s{sU}, s{sU}, s59")
        a(f"s_lshl_b32 s59, s{sT[5]}, 8")
        a(f"s_add_u32 s{sU}, s{sU}, s59")
        a(f"s_mul_i32 s{sU}, s{sU}, 450")
        a(f"v_and_b32 v{vT[7]}, 255, v0")
        a(f"v_lshlrev_b32 v{vK2}, 1, v{vT[7]}")
        for b in range(2):
            for i in range(4):
                e = 4 * b + i
                a(f"s_add_u32 s59, s{sU}, {(2*b + 64*i)*450}")
                a(f"buffer_load_ushort v{SJ+e}, v{vK2}, s[{SWR}:{SWR+3}], s59 offen")
                a(f"buffer_load_ushort v{SJ+8+e}, v{vK2}, s[{SWI}:{SWI+3}], s59 offen")
        a(f"s_lshl_b32 s59, s{sT[5]}, 9")
        a(f"s_lshl_b32 s60, s{sT[2]}, 5")
        a(f"s_add_u32 s59, s59, s60")
        a(f"s_lshl_b32 s60, s{sT[4]}, 12")
        a(f"s_add_u32 s59, s59, s60")
        a(f"s_lshl_b32 s60, s{sT[3]}, 10")
        a(f"s_add_u32 s59, s59, s60")
        a(f"s_add_u32 s59, s59, {WS_WT}")
        a(f"v_lshlrev_b32 v{vWTS}, 13, v{vT[7]}")
        a(f"v_add_u32 v{vWTS}, s59, v{vWTS}")
    LA = int(os.environ.get("K1LA", "3"))
    for c in range(LA):
        issue_chunk(c)
    stamp(a, 2)
    issued = LA
    for c in range(7):
        nside = 16 if issued == 7 and c + LA > 7 else 0
        n = (issued - 1 - c) * 8 + nside
        a(f"s_waitcnt vmcnt({n})")
        a("s_barrier")
        if c in (0, 3, 6): stamp(a, 3 + c // 3)
        if issued < 7:
            assert issued < NSLOT or c >= issued - NSLOT + 2
            issue_chunk(issued); issued += 1
        elif c + LA == 7:
            side_loads()
    a("s_waitcnt vmcnt(0)")
    for e in range(8):
        a(f"v_lshl_or_b32 v{SJ+e}, v{SJ+8+e}, 16, v{SJ+e}")
    a(f"v_cmp_gt_u32 vcc, 225, v{vT[7]}")
    a("s_and_saveexec_b64 s[64:65], vcc")
    a("s_cbranch_execz L1_end2")
    a(f"buffer_store_dwordx4 {vr(SJ,4)}, v{vWTS}, s[{SWS}:{SWS+3}], 0 offen")
    a(f"buffer_store_dwordx4 {vr(SJ+4,4)}, v{vWTS}, s[{SWS}:{SWS+3}], 0 offen offset:16")
    a.label("L1_end2")
    stamp(a, 6)
    stamp_flush(a, 0, 7, 10, 4, sWV)
    a("s_endpgm")
    a.label("L1_comp")
    a(f"v_lshrrev_b32 v{vT[0]}, 1, v{vG}")
    a(f"v_and_b32 v{vT[1]}, 1, v{vG}")
    a(f"v_lshl_add_u32 v{vT[0]}, v{vT[0]}, 2, v{vT[1]}")
    a(f"v_mul_u32_u24 v{vT[0]}, 896, v{vT[0]}")
    a(f"v_lshrrev_b32 v{vT[1]}, 2, v{vM}")
    a(f"v_mul_u32_u24 v{vT[1]}, 224, v{vT[1]}")
    a(f"v_and_b32 v{vT[2]}, 3, v{vM}")
    a(f"v_lshl_add_u32 v{vT[1]}, v{vT[2]}, 3, v{vT[1]}")
    a(f"v_add3_u32 v{vTR[0]}, v{vT[0]}, v{vT[1]}, 0")
    a(f"v_add_u32 v{vTR[0]}, 16384, v{vTR[0]}")
    a(f"v_add_u32 v{vTR[1]}, {2*SLOT}, v{vTR[0]}")
    a(f"v_add_u32 v{vTR[2]}, {4*SLOT}, v{vTR[0]}")
    a(f"v_lshrrev_b32 v{vT[0]}, 1, v{vM}")
    a(f"v_xor_b32 v{vT[0]}, v{vT[0]}, v{vG}")
    a(f"v_xor_b32 v{vT[1]}, 4, v{vT[0]}")
    a(f"v_lshlrev_b32 v{vT[2]}, 7, v{vM}")
    a(f"v_add_u32 v{vT[2]}, s{sM0X}, v{vT[2]}")
    a(f"v_lshl_add_u32 v{vXR[0]}, v{vT[0]}, 4, v{vT[2]}")
    a(f"v_lshl_add_u32 v{vXR[1]}, v{vT[1]}, 4, v{vT[2]}")
    for sg in (1, 2):
        a(f"v_add_u32 v{vXR[2*sg]}, {2*sg*SLOT}, v{vXR[0]}")
        a(f"v_add_u32 v{vXR[2*sg+1]}, {2*sg*SLOT}, v{vXR[1]}")
    for i in range(56):
        a(f"v_mov_b32 v{ACC+i}, 0")
    a("s_waitcnt lgkmcnt(0)")
    stamp(a, 1)
    stamp(a, 2)
    srd(a, SWS, 10, WS_SIZE)

    def read_list(ks, b):
        c, ksl = ks >> 1, ks & 1
        sl = c % NSLOT
        sg, so = sl >> 1, (sl & 1) * SLOT
        L = []
        for t in range(2):
            L.append(f"ds_read_b128 {vr(xf(b,t),4)}, v{vXR[2*sg+ksl]} offset:{so + t*2048}")
        for nt in range(7):
            for rho in range(2):
                off = so + ksl * 7168 + rho * 1792 + nt * 32
                L.append(f"ds_read_b64_tr_b16 {vr(wf(b,nt)+2*rho,2)}, v{vTR[sg]} offset:{off}")
        return L
    def mfma_list(b, swapab):
        L = []
        for nt in range(7):
            for t in range(2):
                A, B = vr(xf(b, t), 4), vr(wf(b, nt), 4)
                if swapab: A, B = B, A
                L.append(f"v_mfma_f32_16x16x32_bf16 {vr(acc(t,nt),4)}, {A}, {B}, {vr(acc(t,nt),4)}")
        return L
    def interleave(M, R):
        ri = 0
        for i, m in enumerate(M):
            a(m)
            for _ in range(2):
                if ri < len(R):
                    a(R[ri]); ri += 1
        while ri < len(R):
            a(R[ri]); ri += 1
    def mainloop(swapab):
        for c in range(7):
            a("s_barrier")
            if c in (0, 3, 6): stamp(a, 3 + c // 3)
            if c == 0:
                for r in read_list(0, 0): a(r)
            else:
                a("s_waitcnt lgkmcnt(0)")
                interleave(mfma_list(1, swapab), read_list(2 * c, 0))
            a("s_waitcnt lgkmcnt(0)")
            interleave(mfma_list(0, swapab), read_list(2 * c + 1, 1))
        a("s_waitcnt lgkmcnt(0)")
        interleave(mfma_list(1, swapab), [])

    STG = 2 * SLOT
    a(f"s_cmp_ge_u32 s{sTYPE}, 2")
    a("s_cbranch_scc1 L1_vf")
    a(f"s_cmp_eq_u32 s{sTYPE}, 0")
    a(f"s_cselect_b32 s{sSC}, {f32_bits(QSCALE):#x}, 1.0")
    mainloop(True)
    stamp(a, 6)
    a(f"s_lshl_b32 s{sT[0]}, s{sMT}, 2")
    a(f"s_add_u32 s{sT[0]}, s{sT[0]}, s{sW}")
    a(f"s_lshl_b32 s{sT[0]}, s{sT[0]}, 11")
    a(f"s_lshl_b32 s{sT[1]}, s{sNT4}, 19")
    a(f"s_add_u32 s{sT[0]}, s{sT[0]}, s{sT[1]}")
    a(f"s_lshl_b32 s{sT[0]}, s{sT[0]}, s{sTYPE}")
    a(f"s_cmp_eq_u32 s{sTYPE}, 0")
    a(f"s_cselect_b32 s{sT[1]}, {WS_Q}, {WS_KV}")
    a(f"s_add_u32 s{sT[0]}, s{sT[0]}, s{sT[1]}")
    a(f"s_cmp_eq_u32 s{sTYPE}, 0")
    csel(a, sT[1], 131072, 262144)
    a(f"s_lshl_b32 s{sT[2]}, s{sW}, 13")
    a(f"s_add_u32 s{sT[2]}, s{sT[2]}, {STG}")
    a(f"v_and_b32 v{vT[0]}, 7, v{vM}")
    a(f"v_and_b32 v{vT[1]}, 8, v{vM}")
    a(f"v_lshl_add_u32 v{vT[0]}, v{vT[1]}, 1, v{vT[0]}")
    a(f"v_lshlrev_b32 v{vT[0]}, 4, v{vT[0]}")
    a(f"v_add_u32 v{vT[0]}, s{sT[2]}, v{vT[0]}")
    a(f"v_and_b32 v{vT[1]}, 31, v{vLANE}")
    a(f"v_lshrrev_b32 v{vT[2]}, 5, v{vLANE}")
    a(f"v_lshlrev_b32 v{vT[2]}, 11, v{vT[2]}")
    a(f"v_lshl_add_u32 v{vT[1]}, v{vT[1]}, 4, v{vT[2]}")
    a(f"v_add_u32 v{vT[1]}, s{sT[2]}, v{vT[1]}")
    a(f"s_mul_i32 s{sT[3]}, s{sTYPE}, 0x3f803f80")
    a(f"s_mul_i32 s{sT[4]}, s{sTYPE}, 0x3f80")
    a(f"v_mov_b32 v{vE[0]}, s{sT[3]}")
    a(f"v_mov_b32 v{vE[1]}, s{sT[4]}")
    a(f"ds_write_b64 v{vT[1]}, {vr(vE[0],2)} offset:{1536+8}")
    a(f"ds_write_b64 v{vT[1]}, {vr(vE[0],2)} offset:{4096+1536+8}")
    for nt in range(7):
        a(f"v_add_u32 v{vT[2]}, {4*nt}, v{vG}")
        a(f"v_mul_u32_u24 v{vT[3]}, 37, v{vT[2]}")
        a(f"v_lshrrev_b32 v{vT[3]}, 8, v{vT[3]}")
        a(f"v_add_u32 v{vT[2]}, v{vT[2]}, v{vT[3]}")
        a(f"v_lshrrev_b32 v{vT[3]}, 1, v{vT[2]}")
        a(f"v_and_b32 v{vT[2]}, 1, v{vT[2]}")
        a(f"v_lshl_add_u32 v{vT[3]}, v{vT[3]}, 9, v{vT[0]}")
        a(f"v_lshl_add_u32 v{vT[3]}, v{vT[2]}, 3, v{vT[3]}")
        for t in range(2):
            r = acc(t, nt)
            for i in range(4):
                a(f"v_mul_f32 v{r+i}, s{sSC}, v{r+i}")
            a(f"v_cvt_pk_bf16_f32 v{r}, v{r}, v{r+1}")
            a(f"v_cvt_pk_bf16_f32 v{r+1}, v{r+2}, v{r+3}")
            a(f"ds_write_b64 v{vT[3]}, {vr(r,2)} offset:{t*128}")
    a(f"v_lshlrev_b32 v{vT[4]}, 4, v{vLANE}")
    a(f"v_add_u32 v{vT[5]}, s{sT[2]}, v{vT[4]}")
    a("s_waitcnt lgkmcnt(0)")
    for j in range(8):
        a(f"ds_read_b128 {vr(WF+4*j,4)}, v{vT[5]} offset:{j*1024}")
    for j in range(8):
        a(f"s_waitcnt lgkmcnt({7-j})")
        a(f"buffer_store_dwordx4 {vr(WF+4*j,4)}, v{vT[4]}, s[{SWS}:{SWS+3}], s{sT[0]} offen offset:{(j&1)*1024}")
        if j & 1:
            a(f"s_add_u32 s{sT[0]}, s{sT[0]}, s{sT[1]}")
    a("s_branch L1_side")
    a.label("L1_vf")
    mainloop(False)
    stamp(a, 6)
    a(f"s_cmp_eq_u32 s{sTYPE}, 3")
    a("s_cbranch_scc1 L1_fepi")
    a(f"s_lshl_b32 s{sT[0]}, s{sMT}, 2")
    a(f"s_add_u32 s{sT[0]}, s{sT[0]}, s{sW}")
    a(f"s_lshl_b32 s{sT[0]}, s{sT[0]}, 12")
    a(f"s_lshl_b32 s{sT[1]}, s{sNT4}, 20")
    a(f"s_add_u32 s{sT[0]}, s{sT[0]}, s{sT[1]}")
    a(f"s_add_u32 s{sT[0]}, s{sT[0]}, {WS_KV + 2048}")
    a(f"v_lshlrev_b32 v{vT[0]}, 18, v{vG}")
    a(f"v_bfe_u32 v{vT[1]}, v{vLANE}, 2, 2")
    a(f"v_lshl_add_u32 v{vT[0]}, v{vT[1]}, 9, v{vT[0]}")
    a(f"v_and_b32 v{vT[1]}, 3, v{vLANE}")
    a(f"v_lshl_add_u32 v{vT[0]}, v{vT[1]}, 4, v{vT[0]}")
    for i in range(4):
        a(f"v_mov_b32 v{vE[i]}, 0x3f803f80")
    a(f"buffer_store_dwordx4 {vr(vE[0],4)}, v{vT[0]}, s[{SWS}:{SWS+3}], s{sT[0]} offen offset:{28*16}")
    a(f"v_lshlrev_b32 v{vT[5]}, 9, v{vG}")
    for nt in range(7):
        r0, r1 = acc(0, nt), acc(1, nt)
        a(f"v_add_u32 v{vT[2]}, {16*nt}, v{vM}")
        a(f"v_mul_u32_u24 v{vT[3]}, 147, v{vT[2]}")
        a(f"v_lshrrev_b32 v{vT[3]}, 12, v{vT[3]}")
        a(f"v_mul_u32_u24 v{vT[4]}, 28, v{vT[3]}")
        a(f"v_sub_u32 v{vT[2]}, v{vT[2]}, v{vT[4]}")
        a(f"v_lshl_add_u32 v{vT[3]}, v{vT[3]}, 18, v{vT[5]}")
        a(f"v_lshl_add_u32 v{WF+nt}, v{vT[2]}, 4, v{vT[3]}")
        a(f"v_cvt_pk_bf16_f32 v{r0}, v{r0}, v{r0+1}")
        a(f"v_cvt_pk_bf16_f32 v{r0+1}, v{r0+2}, v{r0+3}")
        a(f"v_cvt_pk_bf16_f32 v{r0+2}, v{r1}, v{r1+1}")
        a(f"v_cvt_pk_bf16_f32 v{r0+3}, v{r1+2}, v{r1+3}")
        a(f"buffer_store_dwordx4 {vr(r0,4)}, v{WF+nt}, s[{SWS}:{SWS+3}], s{sT[0]} offen")
    a("s_branch L1_side")
    a.label("L1_fepi")
    PP = 144
    a(f"v_mul_u32_u24 v{vT[0]}, {PP}, v{vM}")
    a(f"v_lshl_add_u32 v{vT[0]}, v{vG}, 3, v{vT[0]}")
    a(f"s_lshl_b32 s{sT[0]}, s{sW}, 5")
    a(f"s_add_u32 s{sT[0]}, s{sT[0]}, {STG}")
    a(f"v_add_u32 v{vT[0]}, s{sT[0]}, v{vT[0]}")
    for nt in range(7):
        r0, r1 = acc(0, nt), acc(1, nt)
        w0 = wf(0, nt)
        for i in range(4):
            a(f"v_add_f32 v{w0+i}, v{r0+i}, v{r1+i}")
            a(f"v_sub_f32 v{r1+i}, v{r0+i}, v{r1+i}")
        a(f"v_cvt_pk_bf16_f32 v{r0}, v{w0}, v{w0+1}")
        a(f"v_cvt_pk_bf16_f32 v{r0+1}, v{w0+2}, v{w0+3}")
        a(f"v_cvt_pk_bf16_f32 v{r0+2}, v{r1}, v{r1+1}")
        a(f"v_cvt_pk_bf16_f32 v{r0+3}, v{r1+2}, v{r1+3}")
        a(f"ds_write_b64 v{vT[0]}, {vr(r0,2)} offset:{nt*16*PP}")
        a(f"ds_write_b64 v{vT[0]}, {vr(r0+2,2)} offset:{(112+nt*16)*PP}")
    a(f"v_lshrrev_b32 v{vT[1]}, 3, v{vLANE}")
    a(f"s_lshl_b32 s{sT[0]}, s{sW}, 3")
    a(f"v_add_u32 v{vT[1]}, s{sT[0]}, v{vT[1]}")
    a(f"v_and_b32 v{vT[2]}, 7, v{vLANE}")
    a(f"v_mul_u32_u24 v{vT[3]}, {PP}, v{vT[1]}")
    a(f"v_lshl_add_u32 v{vT[3]}, v{vT[2]}, 4, v{vT[3]}")
    a(f"v_add_u32 v{vT[3]}, {STG}, v{vT[3]}")
    a(f"s_mul_i32 s{sT[0]}, s{sNT4}, {112*2048}")
    a(f"s_and_b32 s{sT[1]}, s{sMT}, 3")
    a(f"s_lshl_b32 s{sT[1]}, s{sT[1]}, 9")
    a(f"s_add_u32 s{sT[0]}, s{sT[0]}, s{sT[1]}")
    a(f"s_lshr_b32 s{sT[1]}, s{sMT}, 2")
    a(f"s_lshl_b32 s{sT[1]}, s{sT[1]}, 7")
    a(f"s_add_u32 s{sT[0]}, s{sT[0]}, s{sT[1]}")
    a(f"s_add_u32 s{sT[0]}, s{sT[0]}, {WS_X1}")
    a(f"v_lshlrev_b32 v{vT[2]}, 4, v{vT[2]}")
    for j in range(7):
        a(f"v_add_u32 v{vT[4]}, {32*j}, v{vT[1]}")
        a(f"v_add_u32 v{vT[5]}, {448-112}, v{vT[4]}")
        a(f"v_cmp_le_u32 vcc, 112, v{vT[4]}")
        a("s_nop 1")
        a(f"v_cndmask_b32 v{vT[4]}, v{vT[4]}, v{vT[5]}, vcc")
        a(f"v_lshl_add_u32 v{XF+j}, v{vT[4]}, 11, v{vT[2]}")
    a("s_waitcnt lgkmcnt(0)")
    a("s_barrier")
    for j in range(7):
        a(f"ds_read_b128 {vr(WF+4*j,4)}, v{vT[3]} offset:{j*32*PP}")
    for j in range(7):
        a(f"s_waitcnt lgkmcnt({6-j})")
        a(f"buffer_store_dwordx4 {vr(WF+4*j,4)}, v{XF+j}, s[{SWS}:{SWS+3}], s{sT[0]} offen")
    a.label("L1_side")
    stamp_flush(a, 0, 7, 10, 4, sWV)
    a.label("L1_end")
    a("s_endpgm")
    return kdesc(name, 176, 100, 176), f"; @launch kernel={name} grid=(256,1,1) block=(512,1,1) lds={K1_LDS}"
```

```python
from common import *
import math

NSL = 8
RING = NSL * 16384
LM = RING
FLAG = LM + 8192
K2_LDS = FLAG + 64

def dorder(r, h):
    return (r & 3) + 8 * (r >> 2) + 4 * h

def fft_tables():
    quads = []
    def pack_mat(fn):
        out = []
        for t in range(2):
            q = np.zeros((64, 4), np.uint32)
            for l in range(64):
                lam, h = l & 31, l >> 5
                for j in range(4):
                    lo = bf16_bits(fn(lam, h, t, 2 * j)); hi = bf16_bits(fn(lam, h, t, 2 * j + 1))
                    q[l, j] = lo | (hi << 16)
            out.append(q)
        return out
    def pack_f32(fn):
        out = []
        for qd in range(4):
            q = np.zeros((64, 4), np.uint32)
            for l in range(64):
                lam, h = l & 31, l >> 5
                for j in range(4):
                    q[l, j] = f32_bits(fn(lam, h, 4 * qd + j))
            out.append(q)
        return out
    kap = lambda h, t, e: dorder(8 * t + e, h)
    tp = 2 * np.pi
    quads += pack_mat(lambda lam, h, t, e: np.cos(tp * lam * kap(h, t, e) / 32))
    quads += pack_mat(lambda lam, h, t, e: -np.sin(tp * lam * kap(h, t, e) / 32))
    quads += pack_mat(lambda lam, h, t, e: np.sin(tp * lam * kap(h, t, e) / 32))
    scale = 2.0 / (2048 * 448)
    for p in range(2):
        s1 = lambda h, t, e: 16 * t + 8 * h + e
        quads += pack_mat(lambda v1, h, t, e: np.cos(tp * s1(h, t, e) * (2 * v1 + p) / 64))
        quads += pack_mat(lambda v1, h, t, e: -np.sin(tp * s1(h, t, e) * (2 * v1 + p) / 64))
        quads += pack_mat(lambda v1, h, t, e: np.sin(tp * s1(h, t, e) * (2 * v1 + p) / 64))
        quads += pack_f32(lambda v1, h, r: np.cos(tp * dorder(r, h) * (2 * v1 + p) / 2048))
        quads += pack_f32(lambda v1, h, r: -np.sin(tp * dorder(r, h) * (2 * v1 + p) / 2048))
        quads += pack_f32(lambda s2, h, r: scale * np.cos(tp * s2 * (2 * dorder(r, h) + p) / 2048))
        quads += pack_f32(lambda s2, h, r: scale * np.sin(tp * s2 * (2 * dorder(r, h) + p) / 2048))
        quads += pack_mat(lambda s1_, h, t, e: np.cos(tp * s1_ * (2 * kap(h, t, e) + p) / 64))
        quads += pack_mat(lambda s1_, h, t, e: np.sin(tp * s1_ * (2 * kap(h, t, e) + p) / 64))
        quads += pack_mat(lambda s1_, h, t, e: -np.sin(tp * s1_ * (2 * kap(h, t, e) + p) / 64))
    return np.concatenate([q.reshape(-1) for q in quads])

TAB_BYTES = (6 + 56) * 1024

EXP = os.environ.get('K2EXP', '')
def gen_k2(a):
    name = "attn_fft_kernel"
    khead(a, name)
    SWS, SKV, STB_ = 8, 12, 16
    STB = STB_
    sHEAD, sQB, sW, sQH, sKQ = 20, 21, 22, 23, 24
    sT = [25, 26, 27, 28, 29]
    sMODE, sCNT, sDOFF, sM0, sSEL = 30, 31, 32, 33, 34
    sQOFF = 35
    vLANE = 1
    vA0, vL0, vL1 = 2, 3, 4
    vMX = [5, 6]
    vT = [8, 9, 10, 11, 12, 13, 14, 15]
    Q = 16
    KF = 32
    VF = 48
    P = 64
    S = 80
    O = 112
    MF = "v_mfma_f32_32x32x16_bf16"
    a("s_cmp_ge_u32 s2, 256")
    a("s_cbranch_scc1 L2_end")
    stamp(a, 0)
    a("s_load_dwordx2 s[4:5], s[0:1], 64")
    a(f"v_lshrrev_b32 v{vT[0]}, 6, v0")
    a(f"v_and_b32 v{vLANE}, 63, v0")
    a(f"v_readfirstlane_b32 s{sW}, v{vT[0]}")
    a(f"s_and_b32 s{sHEAD}, s2, 7")
    a(f"s_lshl_b32 s{sHEAD}, s{sHEAD}, 1")
    a(f"s_bfe_u32 s{sT[0]}, s2, 0x10003")
    a(f"s_add_u32 s{sHEAD}, s{sHEAD}, s{sT[0]}")
    a(f"s_lshr_b32 s{sQB}, s2, 4")
    a(f"v_lshlrev_b32 v{vA0}, 4, v{vLANE}")
    a(f"s_cmp_ge_u32 s{sW}, 10")
    a("s_cbranch_scc1 L2_fft")
    a(f"s_cmp_ge_u32 s{sW}, 8")
    a("s_cbranch_scc1 L2_loader")
    a(f"s_and_b32 s{sQH}, s{sW}, 1")
    a(f"s_lshr_b32 s{sKQ}, s{sW}, 1")
    a(f"s_lshl_b32 s{sT[0]}, s{sKQ}, 12")
    a(f"v_add_u32 v{vL0}, s{sT[0]}, v{vA0}")
    a(f"v_add_u32 v{vL1}, 0x10000, v{vL0}")
    a(f"s_lshl_b32 s{sQOFF}, s{sQB}, 1")
    a(f"s_add_u32 s{sQOFF}, s{sQOFF}, s{sQH}")
    a(f"s_lshl_b32 s{sQOFF}, s{sQOFF}, 12")
    a(f"s_lshl_b32 s{sT[0]}, s{sHEAD}, 17")
    a(f"s_add_u32 s{sQOFF}, s{sQOFF}, s{sT[0]}")
    a(f"s_lshl_b32 s{sT[0]}, s{sHEAD}, 18")
    a(f"s_lshl_b32 s{sT[1]}, s{sKQ}, 16")
    a(f"s_add_u32 s{sT[0]}, s{sT[0]}, s{sT[1]}")
    a(f"s_add_u32 s{sT[0]}, s{sT[0]}, {WS_KV}")
    a(f"s_mov_b32 s{sSEL}, 0x07060302")
    a(f"s_mov_b32 s{sMODE}, 0")
    a(f"v_mov_b32 v{vMX[0]}, 0xff800000")
    a(f"v_mov_b32 v{vMX[1]}, 0xff800000")
    a(f"v_mov_b32 v{vT[0]}, {FLAG}")
    a(f"v_mov_b32 v{vT[1]}, 0")
    a(f"ds_write_b32 v{vT[0]}, v{vT[1]}")
    a("s_waitcnt lgkmcnt(0)")
    srd(a, SWS, 4, WS_SIZE)
    a(f"s_add_u32 s{SKV}, s4, s{sT[0]}")
    a(f"s_addc_u32 s{SKV+1}, s5, 0")
    a(f"s_and_b32 s{SKV+1}, s{SKV+1}, 0xffff")
    a(f"s_mov_b32 s{SKV+2}, 65536")
    a(f"s_mov_b32 s{SKV+3}, 0x20000")
    for j in range(4):
        a(f"buffer_load_dwordx4 {vr(Q+4*j,4)}, v{vA0}, s[{SWS}:{SWS+3}], s{sQOFF} offen offset:{1024*j}")
    a.label("L2_main")
    stamp(a, 1)
    a(f"buffer_load_dwordx4 {vr(KF,4)}, v{vA0}, s[{SKV}:{SKV+3}], 0 offen")
    a(f"buffer_load_dwordx4 {vr(KF+4,4)}, v{vA0}, s[{SKV}:{SKV+3}], 0 offen offset:1024")
    for i in range(32):
        a(f"v_mov_b32 v{O+i}, 0")
    for i in range(8):
        a(f"v_mov_b32 v{P+8+i}, 0")
        a(f"v_mov_b32 v{VF+8+i}, 0")
    a("s_waitcnt vmcnt(0)")
    stamp(a, 2)
    def qk(T, kf):
        return [f"{MF} {vr(S+16*T,16)}, {vr(kf,4)}, {vr(Q+8*T,4)}, 0",
                f"{MF} {vr(S+16*T,16)}, {vr(kf+4,4)}, {vr(Q+8*T+4,4)}, {vr(S+16*T,16)}"]
    def pv(T, vf):
        return [f"{MF} {vr(O+16*T,16)}, {vr(vf,4)}, {vr(P+8*T,4)}, {vr(O+16*T,16)}",
                f"{MF} {vr(O+16*T,16)}, {vr(vf+4,4)}, {vr(P+8*T+4,4)}, {vr(O+16*T,16)}"]
    def maxupd():
        for T in range(2):
            for m in qk(T, KF): a(m)
        a("s_nop 9")
        for T in range(2):
            for i in range(8):
                a(f"v_max3_f32 v{vMX[T]}, v{S+16*T+2*i}, v{S+16*T+2*i+1}, v{vMX[T]}")
    maxupd()
    for T in range(2):
        a(f"v_mov_b32 v{vT[2*T]}, v{vMX[T]}")
        a(f"v_mov_b32 v{vT[2*T+1]}, v{vMX[T]}")
    a("s_nop 1")
    for T in range(2):
        a(f"v_permlane32_swap_b32 v{vT[2*T]}, v{vT[2*T+1]}")
    for T in range(2):
        a(f"v_max_f32 v{vMX[T]}, v{vT[2*T]}, v{vT[2*T+1]}")
    a("s_mov_b32 exec_lo, 0")
    for T in range(2):
        a(f"v_sub_f32 v{vT[0]}, 0, v{vMX[T]}")
        a(f"v_and_b32 v{vT[1]}, 0xffff0000, v{vT[0]}")
        a(f"v_sub_f32 v{vT[0]}, v{vT[0]}, v{vT[1]}")
        a(f"v_and_b32 v{vT[2]}, 0xffff0000, v{vT[0]}")
        a(f"v_sub_f32 v{vT[0]}, v{vT[0]}, v{vT[2]}")
        a(f"v_perm_b32 v{Q+8*T+6}, v{vT[2]}, v{vT[1]}, s{sSEL}")
        a(f"v_lshrrev_b32 v{Q+8*T+7}, 16, v{vT[0]}")
    a("s_mov_b32 exec_lo, -1")
    a("s_nop 3")
    for m in qk(0, KF): a(m)
    a(f"s_mov_b32 s{sCNT}, {16 // NSL}")
    a("s_nop 7")
    stamp(a, 3)
    a.label("L2_loop")
    def half(T, mf):
        Sa, Pa = S + 16 * T, P + 8 * T
        def perm(j):
            a(f"v_cvt_pk_bf16_f32 v{Pa+j}, v{Sa+2*j}, v{Sa+2*j+1}")
        for q in range(4):
            a(mf[q])
            for i in range(4):
                a(f"v_exp_f32 v{Sa+4*q+i}, v{Sa+4*q+i}")
            if q >= 1:
                perm(2 * (q - 1)); perm(2 * (q - 1) + 1)
        perm(6); perm(7)
    for u in range(NSL):
        c, n = (u & 1), 1 - (u & 1)
        kofs = ((u + 1) % NSL) * 16384
        vofs = u * 16384 + 2048
        def rd(dst, ofs):
            base = vL0 if ofs < 65536 else vL1
            if 'nods' not in EXP: a(f"ds_read_b128 {vr(dst,4)}, v{base} offset:{ofs & 65535}")
        if 'nobar' not in EXP: a("s_barrier")
        rd(KF + 8 * n, kofs); rd(KF + 8 * n + 4, kofs + 1024)
        rd(VF + 8 * c, vofs); rd(VF + 8 * c + 4, vofs + 1024)
        half(0, qk(1, KF + 8 * c) + pv(1, VF + 8 * n))
        a("s_waitcnt lgkmcnt(0)")
        half(1, qk(0, KF + 8 * n) + pv(0, VF + 8 * c))
    a(f"s_sub_u32 s{sCNT}, s{sCNT}, 1")
    a(f"s_cmp_lg_u32 s{sCNT}, 0")
    a("s_cbranch_scc1 L2_loop")
    stamp(a, 4)
    for m in pv(1, VF + 8): a(m)
    a(f"s_lshl_b32 s{sT[0]}, s{sW}, 13")
    a(f"v_add_u32 v{vT[0]}, s{sT[0]}, v{vA0}")
    a(f"v_lshlrev_b32 v{vT[1]}, 2, v{vLANE}")
    a(f"s_lshl_b32 s{sT[0]}, s{sW}, 10")
    a(f"s_add_u32 s{sT[0]}, s{sT[0]}, {LM}")
    a(f"v_add_u32 v{vT[2]}, s{sT[0]}, v{vT[1]}")
    a(f"v_mov_b32 v{vT[4]}, {FLAG}")
    a(f"v_mov_b32 v{vT[5]}, 1")
    a(f"v_mov_b32 v{vT[3]}, 0x53800000")
    for j in range(4):
        a(f"ds_write_b128 v{vT[0]}, {vr(O+4*j,4)} offset:{j*1024}")
    a(f"ds_write_b32 v{vT[2]}, v{O+12}")
    a(f"ds_write_b32 v{vT[2]}, v{vMX[0]} offset:256")
    a(f"ds_write_b32 v{vT[2]}, v{vMX[1]} offset:768")
    a(f"v_max3_f32 v{vT[6]}, abs(v{O}), abs(v{O+1}), abs(v{O+2})")
    for i in range(3, 15, 2):
        a(f"v_max3_f32 v{vT[6]}, abs(v{O+i}), abs(v{O+i+1}), v{vT[6]}")
    a(f"v_cmp_u_f32 s[36:37], v{O}, v{O+1}")
    for i in range(2, 16, 2):
        a(f"v_cmp_u_f32 vcc, v{O+i}, v{O+i+1}")
        a(f"s_or_b64 s[36:37], s[36:37], vcc")
    for j in range(4):
        a(f"ds_write_b128 v{vT[0]}, {vr(O+16+4*j,4)} offset:{4096+j*1024}")
    a(f"ds_write_b32 v{vT[2]}, v{O+16+12} offset:512")
    a(f"v_max3_f32 v{vT[6]}, abs(v{O+15}), abs(v{O+16}), v{vT[6]}")
    for i in range(17, 31, 2):
        a(f"v_max3_f32 v{vT[6]}, abs(v{O+i}), abs(v{O+i+1}), v{vT[6]}")
    a(f"v_max_f32 v{vT[6]}, abs(v{O+31}), v{vT[6]}")
    for i in range(16, 32, 2):
        a(f"v_cmp_u_f32 vcc, v{O+i}, v{O+i+1}")
        a(f"s_or_b64 s[36:37], s[36:37], vcc")
    a(f"v_cmp_nlt_f32 vcc, v{vT[6]}, v{vT[3]}")
    a(f"s_or_b64 s[36:37], s[36:37], vcc")
    a(f"s_cmp_eq_u64 s[36:37], 0")
    a("s_cbranch_scc1 L2_ok")
    a(f"ds_write_b32 v{vT[4]}, v{vT[5]}")
    a.label("L2_ok")
    a(f"s_and_b32 s{sT[0]}, s{sKQ}, 1")
    a(f"s_lshr_b32 s{sT[1]}, s{sKQ}, 1")
    a(f"s_lshl_b32 s{sT[2]}, s{sQH}, 13")
    a(f"s_lshl_b32 s{sT[3]}, s{sT[0]}, 12")
    a(f"s_add_u32 s{sT[2]}, s{sT[2]}, s{sT[3]}")
    a(f"s_lshl_b32 s{sT[3]}, s{sT[1]}, 11")
    a(f"s_add_u32 s{sT[2]}, s{sT[2]}, s{sT[3]}")
    a(f"v_add_u32 v{vT[0]}, s{sT[2]}, v{vA0}")
    a(f"s_lshl_b32 s{sT[2]}, s{sQH}, 10")
    a(f"s_lshl_b32 s{sT[3]}, s{sT[0]}, 9")
    a(f"s_add_u32 s{sT[2]}, s{sT[2]}, s{sT[3]}")
    a(f"s_add_u32 s{sT[2]}, s{sT[2]}, {LM}")
    a(f"v_or_b32 v{vT[1]}, 128, v{vT[1]}")
    a(f"v_add_u32 v{vT[1]}, s{sT[2]}, v{vT[1]}")
    a("s_waitcnt lgkmcnt(0)")
    a("s_barrier")
    a(f"ds_read_b32 v{vT[5]}, v{vT[4]}")
    LL, MM = KF, KF + 4
    for k in range(4):
        a(f"ds_read_b32 v{LL+k}, v{vT[1]} offset:{k*2048}")
        a(f"ds_read_b32 v{MM+k}, v{vT[1]} offset:{k*2048+256}")
    for k in range(4):
        a(f"ds_read_b128 {vr(S+8*k,4)}, v{vT[0]} offset:{k*16384}")
        a(f"ds_read_b128 {vr(S+8*k+4,4)}, v{vT[0]} offset:{k*16384+1024}")
    a(f"s_lshl_b32 s{sT[2]}, s{sQB}, 3")
    a(f"s_lshl_b32 s{sT[3]}, s{sQH}, 2")
    a(f"s_add_u32 s{sT[2]}, s{sT[2]}, s{sT[3]}")
    a(f"s_lshl_b32 s{sT[3]}, s{sT[0]}, 1")
    a(f"s_add_u32 s{sT[2]}, s{sT[2]}, s{sT[3]}")
    a(f"s_mul_i32 s{sT[2]}, s{sT[2]}, 14336")
    a(f"s_lshl_b32 s{sT[3]}, s{sT[1]}, 9")
    a(f"s_add_u32 s{sT[2]}, s{sT[2]}, s{sT[3]}")
    a(f"s_add_u32 s{sT[2]}, s{sT[2]}, {WS_O}")
    a(f"s_mul_i32 s{sT[3]}, s{sHEAD}, 7")
    a(f"v_lshrrev_b32 v{vT[2]}, 5, v{vLANE}")
    a(f"v_add_u32 v{vT[2]}, s{sT[3]}, v{vT[2]}")
    a(f"v_lshrrev_b32 v{vT[3]}, 1, v{vT[2]}")
    a(f"v_and_b32 v{vT[2]}, 1, v{vT[2]}")
    a(f"v_lshlrev_b32 v{vT[3]}, 8, v{vT[3]}")
    a(f"v_lshl_add_u32 v{vT[3]}, v{vT[2]}, 3, v{vT[3]}")
    a(f"v_and_b32 v{vT[2]}, 15, v{vLANE}")
    a(f"v_lshl_add_u32 v{vT[3]}, v{vT[2]}, 4, v{vT[3]}")
    a(f"v_bfe_u32 v{vT[2]}, v{vLANE}, 4, 1")
    a(f"v_mul_u32_u24 v{vT[2]}, 14336, v{vT[2]}")
    a(f"v_add_u32 v{vT[3]}, v{vT[2]}, v{vT[3]}")
    a("s_waitcnt lgkmcnt(8)")
    a(f"v_readfirstlane_b32 s{sT[4]}, v{vT[5]}")
    a(f"s_cmp_eq_u32 s{sMODE}, 0")
    a(f"s_cselect_b32 s{sT[4]}, s{sT[4]}, 0")
    a(f"s_cmp_lg_u32 s{sT[4]}, 0")
    a("s_cbranch_scc1 L2_fallback")
    a(f"v_max3_f32 v{vT[6]}, v{MM}, v{MM+1}, v{MM+2}")
    a(f"v_max_f32 v{vT[6]}, v{vT[6]}, v{MM+3}")
    for k in range(4):
        a(f"v_sub_f32 v{MM+k}, v{MM+k}, v{vT[6]}")
    for k in range(4):
        a(f"v_exp_f32 v{MM+k}, v{MM+k}")
    a("s_nop 0")
    a(f"v_mul_f32 v{vT[7]}, v{MM}, v{LL}")
    for k in range(1, 4):
        a(f"v_fmac_f32 v{vT[7]}, v{MM+k}, v{LL+k}")
    a(f"v_rcp_f32 v{vT[7]}, v{vT[7]}")
    a("s_nop 0")
    for k in range(4):
        a(f"v_mul_f32 v{MM+k}, v{MM+k}, v{vT[7]}")
    a("s_waitcnt lgkmcnt(0)")
    for i in range(8):
        a(f"v_mul_f32 v{O+i}, v{MM}, v{S+i}")
        for k in range(1, 4):
            a(f"v_fmac_f32 v{O+i}, v{MM+k}, v{S+8*k+i}")
    for j in range(4):
        a(f"v_cvt_pk_bf16_f32 v{P+j}, v{O+2*j}, v{O+2*j+1}")
    a(f"buffer_store_dwordx2 {vr(P,2)}, v{vT[3]}, s[{SWS}:{SWS+3}], s{sT[2]} offen")
    a(f"s_cmp_eq_u32 s{sT[1]}, 0")
    a(f"s_cselect_b32 exec_hi, -1, 0")
    a(f"buffer_store_dwordx2 {vr(P+2,2)}, v{vT[3]}, s[{SWS}:{SWS+3}], s{sT[2]} offen offset:256")
    stamp_flush(a, 1, 5, 4, 8, sW)
    a("s_endpgm")
    a.label("L2_fallback")
    a(f"s_mov_b32 s{sMODE}, 1")
    a("s_waitcnt lgkmcnt(0)")
    a("s_barrier")
    a("s_mov_b32 exec_lo, 0")
    for T in range(2):
        a(f"v_mov_b32 v{Q+8*T+6}, 0")
        a(f"v_mov_b32 v{Q+8*T+7}, 0")
    a("s_mov_b32 exec_lo, -1")
    a(f"s_mov_b32 s{sT[0]}, 0")
    a.label("L2_maxloop")
    a(f"buffer_load_dwordx4 {vr(KF,4)}, v{vA0}, s[{SKV}:{SKV+3}], s{sT[0]} offen")
    a(f"buffer_load_dwordx4 {vr(KF+4,4)}, v{vA0}, s[{SKV}:{SKV+3}], s{sT[0]} offen offset:1024")
    a("s_waitcnt vmcnt(0)")
    maxupd()
    a(f"s_add_u32 s{sT[0]}, s{sT[0]}, 4096")
    a(f"s_cmp_lt_u32 s{sT[0]}, 65536")
    a("s_cbranch_scc1 L2_maxloop")
    a("s_branch L2_main")

    a.label("L2_loader")
    a(f"s_sub_u32 s{sT[0]}, s{sW}, 8")
    a(f"s_lshl_b32 s{sM0}, s{sT[0]}, 13")
    a(f"s_lshl_b32 s{sT[1]}, s{sHEAD}, 18")
    a(f"s_lshl_b32 s{sT[0]}, s{sT[0]}, 17")
    a(f"s_add_u32 s{sT[0]}, s{sT[0]}, s{sT[1]}")
    a(f"s_add_u32 s{sT[0]}, s{sT[0]}, {WS_KV}")
    a(f"s_mov_b32 s{sMODE}, 0")
    a(f"v_mov_b32 v{vT[4]}, {FLAG}")
    a("s_waitcnt lgkmcnt(0)")
    a(f"s_add_u32 s{SKV}, s4, s{sT[0]}")
    a(f"s_addc_u32 s{SKV+1}, s5, 0")
    a(f"s_and_b32 s{SKV+1}, s{SKV+1}, 0xffff")
    a(f"s_mov_b32 s{SKV+2}, 131072")
    a(f"s_mov_b32 s{SKV+3}, 0x20000")
    a.label("L2_lmain")
    def dma(st):
        for qq in range(2):
            a(f"s_add_u32 m0, s{sM0}, {(st % NSL)*16384 + qq*4096}")
            a(f"s_mov_b32 s{sDOFF}, {qq*65536 + st*4096}")
            for j in range(4):
                a(f"buffer_load_dwordx4 v{vA0}, s[{SKV}:{SKV+3}], s{sDOFF} offen offset:{j*1024} lds")
    dma(0); dma(1)
    for qq in range(2):
        a(f"s_lshl_b32 s{sDOFF}, s{sQB}, 12")
        a(f"s_add_u32 s{sDOFF}, s{sDOFF}, {qq*65536}")
        for j in range(4):
            a(f"buffer_load_dwordx4 {vr(16+16*qq+4*j,4)}, v{vA0}, s[{SKV}:{SKV+3}], s{sDOFF} offen offset:{j*1024}")
    for st in range(2, NSL - 1):
        dma(st)
    for it in range(16):
        last = min(it + NSL - 2, 15)
        n = max(last - (it + 1), 0) * 8
        if it == 0: n += 8
        a(f"s_waitcnt vmcnt({n})")
        if 'nobar' not in EXP: a("s_barrier")
        if it + NSL - 1 < 16:
            dma(it + NSL - 1)
    a("s_barrier")
    a(f"ds_read_b32 v{vT[5]}, v{vT[4]}")
    a("s_waitcnt lgkmcnt(0)")
    a(f"v_readfirstlane_b32 s{sT[4]}, v{vT[5]}")
    a(f"s_cmp_eq_u32 s{sMODE}, 0")
    a(f"s_cselect_b32 s{sT[4]}, s{sT[4]}, 0")
    a(f"s_cmp_eq_u32 s{sT[4]}, 0")
    a("s_cbranch_scc1 L2_end")
    a(f"s_mov_b32 s{sMODE}, 1")
    a("s_barrier")
    a("s_branch L2_lmain")

    a.label("L2_fft")
    a("s_cmp_ge_u32 s2, 0" if 'nofft' in EXP else "s_cmp_ge_u32 s2, 225")
    a("s_cbranch_scc1 L2_end")
    DB = 16
    AC = 32
    M1 = 64
    FM = 88
    TW = 112
    WW = 144
    sP, sK = 36, 37
    vTB, vX, vWo, vZ = 2, 2, 2, 2
    a(f"s_sub_u32 s{sP}, s{sW}, 10")
    a("s_getpc_b64 s[6:7]")
    a("s_add_u32 s6, s6, ffttab@rel32@lo+4")
    a("s_addc_u32 s7, s7, ffttab@rel32@hi+12")
    srd(a, STB, 6, TAB_BYTES)
    a(f"v_lshlrev_b32 v{vTB}, 4, v{vLANE}")
    a(f"s_mul_i32 s{sT[0]}, s{sP}, 448")
    a(f"s_add_u32 s{sT[0]}, s{sT[0]}, s2")
    a(f"s_lshl_b32 s{sT[0]}, s{sT[0]}, 11")
    a(f"s_add_u32 s{sT[1]}, s{sT[0]}, {WS_X1}")
    a(f"s_add_u32 s{sT[2]}, s{sT[0]}, {WS_X1 + 224*2048}")
    a(f"s_add_u32 s38, s{sT[0]}, {WS_Z}")
    a(f"s_add_u32 s39, s{sT[0]}, {WS_Z + 224*2048}")
    a(f"s_lshl_b32 s{sT[3]}, s2, 1")
    a(f"s_add_u32 s{sT[3]}, s{sT[3]}, s{sP}")
    a(f"s_lshl_b32 s{sT[3]}, s{sT[3]}, 12")
    a(f"s_add_u32 s{sT[3]}, s{sT[3]}, {WS_WT}")
    a(f"s_mul_i32 s{sT[4]}, s{sP}, {28*1024}")
    a(f"s_add_u32 s{sT[4]}, s{sT[4]}, {6*1024}")
    a(f"s_cmp_eq_u32 s2, 0")
    a(f"s_cselect_b32 s{sK}, 1, 0")
    a(f"s_cmp_eq_u32 s2, 224")
    a(f"s_cselect_b32 s{sK}, 1, s{sK}")
    a("s_waitcnt lgkmcnt(0)")
    srd(a, SWS, 4, WS_SIZE)
    a("s_barrier")
    a(f"buffer_load_dwordx4 {vr(DB,4)}, v{vX}, s[{SWS}:{SWS+3}], s{sT[1]} offen")
    a(f"buffer_load_dwordx4 {vr(DB+4,4)}, v{vX}, s[{SWS}:{SWS+3}], s{sT[1]} offen offset:1024")
    a(f"buffer_load_dwordx4 {vr(DB+8,4)}, v{vX}, s[{SWS}:{SWS+3}], s{sT[2]} offen")
    a(f"buffer_load_dwordx4 {vr(DB+12,4)}, v{vX}, s[{SWS}:{SWS+3}], s{sT[2]} offen offset:1024")
    def tload(dst, quad, n, parity=True):
        for q in range(n):
            off = (quad + q) * 1024
            if parity:
                a(f"s_add_u32 s40, s{sT[4]}, {off}")
            else:
                a(f"s_mov_b32 s40, {off}")
            a(f"buffer_load_dwordx4 {vr(dst+4*q,4)}, v{vTB}, s[{STB}:{STB+3}], s40 offen")
    tload(M1, 0, 6)
    a("s_barrier")
    tload(TW, 6, 8)
    a("s_barrier")
    tload(FM, 0, 6, False)
    for q in range(4):
        a(f"buffer_load_dwordx4 {vr(WW+4*q,4)}, v{vWo}, s[{SWS}:{SWS+3}], s{sT[3]} offen offset:{1024*q}")
    stamp(a, 1)
    a("s_barrier")
    stamp(a, 2)
    a("s_waitcnt vmcnt(18)")
    stamp(a, 3)
    a(f"s_cmp_eq_u32 s{sK}, 0")
    a("s_cbranch_scc1 L2_f1")
    for i in range(8):
        a(f"v_mov_b32 v{DB+8+i}, 0")
    a.label("L2_f1")
    a("s_nop 1")
    def stage(data_is_A, Mr, Mi, Mni):
        def mm(dst, d, m, first):
            for t in range(2):
                D_, M_ = vr(d + 4 * t, 4), vr(m + 4 * t, 4)
                A_, B_ = (D_, M_) if data_is_A else (M_, D_)
                C_ = "0" if (first and t == 0) else vr(dst, 16)
                a(f"v_mfma_f32_32x32x16_bf16 {vr(dst,16)}, {A_}, {B_}, {C_}")
        mm(AC, DB, Mr, True)
        mm(AC + 16, DB, Mi, True)
        mm(AC, DB + 8, Mni, False)
        mm(AC + 16, DB + 8, Mr, False)
        a("s_nop 15")
    def cmul_pack(getc, gets, pre=None):
        for r in range(0, 16, 2):
            for k in range(2):
                rr = r + k
                if pre: pre(rr, k)
                c, s = getc(rr, k), gets(rr, k)
                xr, xi = AC + rr, AC + 16 + rr
                a(f"v_mul_f32 v{vT[0+k]}, v{xi}, {s}")
                a(f"v_mul_f32 v{vT[2+k]}, v{xi}, {c}")
                a(f"v_fma_f32 v{vT[0+k]}, v{xr}, {c}, -v{vT[0+k]}")
                a(f"v_fma_f32 v{vT[2+k]}, v{xr}, {s}, v{vT[2+k]}")
            a(f"v_cvt_pk_bf16_f32 v{DB+r//2}, v{vT[0]}, v{vT[1]}")
            a(f"v_cvt_pk_bf16_f32 v{DB+8+r//2}, v{vT[2]}, v{vT[3]}")
        a("s_nop 1")
    stage(True, M1, M1 + 8, M1 + 16)
    a("s_waitcnt vmcnt(10)")
    cmul_pack(lambda r, k: f"v{TW+r}", lambda r, k: f"v{TW+16+r}")
    tload(TW, 14, 8)
    tload(M1, 22, 6)
    a("s_barrier")
    a("s_waitcnt vmcnt(18)")
    stage(False, FM, FM + 8, FM + 16)
    a("s_waitcnt vmcnt(14)")
    def wpre(r, k):
        a(f"v_lshlrev_b32 v{vT[4+k]}, 16, v{WW+r}")
        a(f"v_and_b32 v{vT[6+k]}, 0xffff0000, v{WW+r}")
    cmul_pack(lambda r, k: f"v{vT[4+k]}", lambda r, k: f"v{vT[6+k]}", wpre)
    a("s_barrier")
    stage(True, FM, FM + 16, FM + 8)
    a("s_waitcnt vmcnt(6)")
    cmul_pack(lambda r, k: f"v{TW+r}", lambda r, k: f"v{TW+16+r}")
    a("s_barrier")
    a("s_waitcnt vmcnt(0)")
    stamp(a, 4)
    stage(True, M1, M1 + 8, M1 + 16)
    a(f"s_cmp_eq_u32 s{sK}, 0")
    a("s_cbranch_scc1 L2_f2")
    for i in range(16):
        a(f"v_mul_f32 v{AC+i}, 0.5, v{AC+i}")
    a.label("L2_f2")
    for j in range(8):
        a(f"v_cvt_pk_bf16_f32 v{DB+j}, v{AC+2*j}, v{AC+2*j+1}")
        a(f"v_cvt_pk_bf16_f32 v{DB+8+j}, v{AC+16+2*j}, v{AC+16+2*j+1}")
    a(f"buffer_store_dwordx4 {vr(DB,4)}, v{vZ}, s[{SWS}:{SWS+3}], s38 offen")
    a(f"buffer_store_dwordx4 {vr(DB+4,4)}, v{vZ}, s[{SWS}:{SWS+3}], s38 offen offset:1024")
    a(f"s_cmp_lg_u32 s{sK}, 0")
    a("s_cbranch_scc1 L2_end")
    a(f"buffer_store_dwordx4 {vr(DB+8,4)}, v{vZ}, s[{SWS}:{SWS+3}], s39 offen")
    a(f"buffer_store_dwordx4 {vr(DB+12,4)}, v{vZ}, s[{SWS}:{SWS+3}], s39 offen offset:1024")
    stamp_flush(a, 1, 5, 4, 8, sW)
    a.label("L2_end")
    a("s_endpgm")
    return kdesc(name, 160, 100, 160), f"; @launch kernel={name} grid=(256,1,1) block=(768,1,1) lds={K2_LDS}"
```

```python
from common import *

SLOT3 = 24576
NS3 = 6
K3_LDS = SLOT3 * NS3

def gen_k3(a):
    name = "gemm3_kernel"
    khead(a, name)
    ACC = 32
    QF = 64
    PF = 96
    acc = lambda t, q: ACC + (t * 4 + q) * 4
    qf = lambda b, q: QF + (b * 4 + q) * 4
    pf = lambda b, t: PF + (b * 2 + t) * 4
    vLANE, vM, vG = 1, 2, 3
    vT = [4, 5, 6, 7, 8, 9, 10, 11]
    vPO = 12
    vDO = 14
    vTR = [112 + i for i in range(12)]
    vPR = [16, 17, 18]
    vST = [20, 21, 22, 23]
    SP, SQ, SO = 24, 28, 32
    sW, sX, sI, sA, sB = 20, 21, 22, 23, 36
    sT = [37, 38, 39, 40, 41, 42]
    sSOFF, sM0, sPB, sROT, sWV = 43, 44, 45, 46, 48
    a("s_cmp_ge_u32 s2, 224")
    a("s_cbranch_scc1 L3_end")
    stamp(a, 0)
    a("s_load_dwordx2 s[4:5], s[0:1], 16")
    a("s_load_dwordx2 s[6:7], s[0:1], 48")
    a("s_load_dwordx2 s[8:9], s[0:1], 64")
    a(f"v_lshrrev_b32 v{vT[0]}, 6, v0")
    a(f"v_and_b32 v{vLANE}, 63, v0")
    a(f"v_readfirstlane_b32 s{sWV}, v{vT[0]}")
    a(f"v_and_b32 v{vM}, 15, v0")
    a(f"v_lshrrev_b32 v{vG}, 4, v{vLANE}")
    a(f"v_lshlrev_b32 v{vPO}, 4, v{vLANE}")
    a(f"s_and_b32 s{sX}, s2, 7")
    a(f"s_lshr_b32 s{sI}, s2, 3")
    a(f"s_and_b32 s{sA}, s{sX}, 3")
    a(f"s_lshl_b32 s{sA}, s{sA}, 2")
    a(f"s_and_b32 s{sT[0]}, s{sI}, 3")
    a(f"s_add_u32 s{sA}, s{sA}, s{sT[0]}")
    a(f"s_lshr_b32 s{sB}, s{sI}, 2")
    a(f"s_and_b32 s{sW}, s{sWV}, 3")
    a(f"s_cmp_lt_u32 s{sWV}, 4")
    a("s_cbranch_scc1 L3_comp")
    a("s_getpc_b64 s[10:11]")
    a("s_add_u32 s10, s10, ftab2@rel32@lo+4")
    a("s_addc_u32 s11, s11, ftab2@rel32@hi+12")
    a(f"s_lshl_b32 s{sT[0]}, s{sT[0]}, 1")
    a(f"s_add_u32 s{sROT}, s{sT[0]}, s{sB}")
    a(f"s_sub_u32 s{sT[1]}, s{sROT}, 7")
    a(f"s_cmp_ge_u32 s{sROT}, 7")
    a(f"s_cselect_b32 s{sROT}, s{sT[1]}, s{sROT}")
    a(f"v_lshrrev_b32 v{vT[0]}, 3, v{vLANE}")
    a(f"v_and_b32 v{vT[1]}, 3, v{vT[0]}")
    a(f"v_lshrrev_b32 v{vT[2]}, 2, v{vT[0]}")
    a(f"v_lshl_add_u32 v{vT[1]}, v{vT[2]}, 3, v{vT[1]}")
    a(f"v_and_b32 v{vT[2]}, 6, v{vT[0]}")
    a(f"v_and_b32 v{vT[3]}, 7, v{vLANE}")
    a(f"v_xor_b32 v{vT[2]}, v{vT[2]}, v{vT[3]}")
    a(f"v_lshlrev_b32 v{vT[2]}, 4, v{vT[2]}")
    a(f"s_lshl_b32 s{sM0}, s{sW}, 11")
    LA = int(os.environ.get("K3LA", "3"))
    def loader(chunk_fn):
        stamp(a, 1)
        def issue(c):
            chunk_fn(c)
            a(f"s_add_u32 s{sROT}, s{sROT}, 1")
            a(f"s_cmp_eq_u32 s{sROT}, 7")
            a(f"s_cselect_b32 s{sROT}, 0, s{sROT}")
        for c in range(LA): issue(c)
        stamp(a, 2)
        issued = LA
        for c in range(7):
            a(f"s_waitcnt vmcnt({(issued-1-c)*6})")
            a("s_barrier")
            if c in (0, 3, 6): stamp(a, 3 + c // 3)
            if issued < 7:
                assert issued < NS3 or c >= issued - NS3 + 2
                issue(issued); issued += 1
        stamp(a, 6)
        stamp_flush(a, 2, 7, 8, 4, sWV)
        a("s_endpgm")
    a(f"s_cmp_ge_u32 s{sX}, 4")
    a("s_cbranch_scc1 L3_lb")
    a(f"v_mul_u32_u24 v{vT[1]}, 896, v{vT[1]}")
    a(f"v_add_u32 v{vDO}, v{vT[1]}, v{vT[2]}")
    a(f"s_lshl_b32 s{sT[0]}, s{sA}, 3")
    a(f"s_lshl_b32 s{sT[1]}, s{sW}, 1")
    a(f"s_add_u32 s{sT[0]}, s{sT[0]}, s{sT[1]}")
    a(f"s_mul_i32 s{sPB}, s{sT[0]}, 14336")
    a(f"s_lshl_b32 s{sT[1]}, s{sB}, 7")
    a(f"s_mul_i32 s{sSOFF}, s{sW}, {16*896}")
    a(f"s_add_u32 s{sSOFF}, s{sSOFF}, s{sT[1]}")
    a(f"s_lshl_b32 s{sT[3]}, s{sW}, 12")
    a("s_waitcnt lgkmcnt(0)")
    a(f"s_add_u32 s{SP}, s8, {WS_O}")
    a(f"s_addc_u32 s{SP+1}, s9, 0")
    a(f"s_and_b32 s{SP+1}, s{SP+1}, 0xffff")
    a(f"s_mov_b32 s{SP+2}, {2048*896}")
    a(f"s_mov_b32 s{SP+3}, 0x20000")
    srd(a, SQ, 4, 448 * 896)
    def chunkA(c):
        sl = (c % NS3) * SLOT3
        a(f"s_lshl_b32 s47, s{sROT}, 11")
        a(f"s_add_u32 s47, s47, s{sPB}")
        for t in range(2):
            a(f"s_add_u32 m0, s{sT[3]}, {sl + t*2048}")
            if t: a(f"s_add_u32 s47, s47, 14336")
            else: a("s_nop 0")
            for ksl in range(2):
                a(f"buffer_load_dwordx4 v{vPO}, s[{SP}:{SP+3}], s47 offen offset:{ksl*1024} lds")
        a(f"s_mul_i32 s47, s{sROT}, {64*896}")
        a(f"s_add_u32 s47, s47, s{sSOFF}")
        for j in range(2):
            a(f"s_add_u32 m0, s{sM0}, {sl + 16384 + j*1024}")
            a(f"s_add_u32 s{sT[2]}, s47, {4*j*896}")
            a(f"buffer_load_dwordx4 v{vDO}, s[{SQ}:{SQ+3}], s{sT[2]} offen lds")
    loader(chunkA)
    a.label("L3_lb")
    a(f"v_lshlrev_b32 v{vT[1]}, 11, v{vT[1]}")
    a(f"v_add_u32 v{vDO}, v{vT[1]}, v{vT[2]}")
    a(f"s_lshl_b32 s{sT[0]}, s{sB}, 2")
    a(f"s_add_u32 s{sT[0]}, s{sT[0]}, s{sW}")
    a(f"s_mul_i32 s{sPB}, s{sT[0]}, 14336")
    a(f"s_lshl_b32 s{sSOFF}, s{sW}, 15")
    a(f"s_lshl_b32 s{sT[1]}, s{sA}, 7")
    a(f"s_add_u32 s{sSOFF}, s{sSOFF}, s{sT[1]}")
    srd(a, SP, 10, 448 * 896)
    a("s_waitcnt lgkmcnt(0)")
    a(f"s_add_u32 s{SQ}, s8, {WS_Z}")
    a(f"s_addc_u32 s{SQ+1}, s9, 0")
    a(f"s_and_b32 s{SQ+1}, s{SQ+1}, 0xffff")
    a(f"s_mov_b32 s{SQ+2}, {2*448*2048}")
    a(f"s_mov_b32 s{SQ+3}, 0x20000")
    def chunkB(c):
        sl = (c % NS3) * SLOT3
        a(f"s_mul_i32 s47, s{sROT}, {64*2048}")
        a(f"s_add_u32 s47, s47, s{sSOFF}")
        for p in range(2):
            for j in range(2):
                a(f"s_add_u32 m0, s{sM0}, {sl + 8192 + p*8192 + j*1024}")
                a(f"s_add_u32 s{sT[2]}, s47, {(p*448 + 4*j)*2048}")
                a(f"buffer_load_dwordx4 v{vDO}, s[{SQ}:{SQ+3}], s{sT[2]} offen lds")
        a(f"s_lshl_b32 s47, s{sROT}, 11")
        a(f"s_add_u32 m0, s{sM0}, {sl}")
        a(f"s_add_u32 s47, s47, s{sPB}")
        for ksl in range(2):
            a(f"buffer_load_dwordx4 v{vPO}, s[{SP}:{SP+3}], s47 offen offset:{ksl*1024} lds")
    loader(chunkB)

    a.label("L3_comp")
    a(f"v_lshrrev_b32 v{vT[4]}, 1, v{vG}")
    a(f"v_and_b32 v{vT[5]}, 1, v{vG}")
    a(f"v_lshrrev_b32 v{vT[6]}, 2, v{vM}")
    a(f"v_lshl_add_u32 v{vT[7]}, v{vT[5]}, 2, v{vT[6]}")
    a(f"v_lshl_add_u32 v{vT[4]}, v{vT[4]}, 4, v{vT[7]}")
    a(f"v_lshlrev_b32 v{vT[4]}, 7, v{vT[4]}")
    a(f"v_and_b32 v{vT[5]}, 3, v{vM}")
    a(f"v_lshl_add_u32 v{vT[4]}, v{vT[5]}, 3, v{vT[4]}")
    a(f"v_lshrrev_b32 v{vT[7]}, 1, v{vT[7]}")
    a(f"v_lshlrev_b32 v{vT[7]}, 5, v{vT[7]}")
    for i in range(32):
        a(f"v_mov_b32 v{ACC+i}, 0")
    def finish_bases():
        for sg in (1, 2):
            for q in range(4):
                a(f"v_add_u32 v{vTR[4*sg+q]}, {2*sg*SLOT3}, v{vTR[q]}")
            a(f"v_add_u32 v{vPR[sg]}, {2*sg*SLOT3}, v{vPR[0]}")
    def read_list(ks, b):
        c, ksl = ks >> 1, ks & 1
        sl = c % NS3
        sg, so = sl >> 1, (sl & 1) * SLOT3
        L = [f"ds_read_b128 {vr(pf(b,t),4)}, v{vPR[sg]} offset:{so + t*2048 + ksl*1024}" for t in range(2)]
        L += [f"ds_read_b64_tr_b16 {vr(qf(b,q)+2*rho,2)}, v{vTR[4*sg+q]} offset:{so + ksl*4096 + rho*1024}" for q in range(4) for rho in range(2)]
        return L
    def mfma_list(b, p_is_A):
        L = []
        for q in range(4):
            for t in range(2):
                A, B = vr(pf(b, t), 4), vr(qf(b, q), 4)
                if not p_is_A: A, B = B, A
                L.append(f"v_mfma_f32_16x16x32_bf16 {vr(acc(t,q),4)}, {A}, {B}, {vr(acc(t,q),4)}")
        return L
    def interleave(M, R):
        ri = 0
        for m in M:
            a(m)
            for _ in range(2):
                if ri < len(R):
                    a(R[ri]); ri += 1
    def mainloop(p_is_A):
        stamp(a, 1); stamp(a, 2)
        for c in range(7):
            a("s_barrier")
            if c in (0, 3, 6): stamp(a, 3 + c // 3)
            if c == 0:
                for r in read_list(0, 0): a(r)
            else:
                a("s_waitcnt lgkmcnt(0)")
                interleave(mfma_list(1, p_is_A), read_list(2*c, 0))
            a("s_waitcnt lgkmcnt(0)")
            interleave(mfma_list(0, p_is_A), read_list(2*c+1, 1))
        a("s_waitcnt lgkmcnt(0)")
        interleave(mfma_list(1, p_is_A), [])
        stamp(a, 6)
    STG = 2 * SLOT3
    a(f"s_cmp_ge_u32 s{sX}, 4")
    a("s_cbranch_scc1 L3_b")
    for q in range(4):
        a(f"v_xor_b32 v{vT[5]}, {q*32}, v{vT[7]}")
        a(f"v_add3_u32 v{vTR[q]}, v{vT[4]}, v{vT[5]}, 0")
        a(f"v_add_u32 v{vTR[q]}, 16384, v{vTR[q]}")
    a(f"s_lshl_b32 s{sT[3]}, s{sW}, 12")
    a(f"v_add_u32 v{vPR[0]}, s{sT[3]}, v{vPO}")
    finish_bases()
    a(f"s_lshl_b32 s{sT[0]}, s{sA}, 3")
    a(f"s_lshl_b32 s{sT[1]}, s{sW}, 1")
    a(f"s_add_u32 s{sT[0]}, s{sT[0]}, s{sT[1]}")
    a(f"s_lshl_b32 s{sT[1]}, s{sB}, 7")
    a(f"s_mul_i32 s{sT[3]}, s{sW}, 4608")
    a(f"s_add_u32 s{sT[3]}, s{sT[3]}, {STG}")
    a(f"v_mul_u32_u24 v{vST[0]}, 144, v{vM}")
    a(f"v_lshl_add_u32 v{vST[0]}, v{vG}, 3, v{vST[0]}")
    a(f"v_add_u32 v{vST[0]}, s{sT[3]}, v{vST[0]}")
    a(f"v_lshrrev_b32 v{vT[5]}, 3, v{vLANE}")
    a(f"v_and_b32 v{vT[6]}, 7, v{vLANE}")
    a(f"v_mul_u32_u24 v{vST[1]}, 144, v{vT[5]}")
    a(f"v_lshl_add_u32 v{vST[1]}, v{vT[6]}, 4, v{vST[1]}")
    a(f"v_add_u32 v{vST[1]}, s{sT[3]}, v{vST[1]}")
    a(f"v_mul_u32_u24 v{vST[2]}, 1792, v{vT[5]}")
    a(f"v_lshl_add_u32 v{vST[2]}, v{vT[6]}, 4, v{vST[2]}")
    a(f"s_mul_i32 s{sT[4]}, s{sT[0]}, {16*1792}")
    a(f"s_add_u32 s{sT[4]}, s{sT[4]}, s{sT[1]}")
    a("s_waitcnt lgkmcnt(0)")
    srd(a, SO, 6, 2048 * 1792)
    mainloop(False)
    a("s_nop 7")
    for q in range(4):
        for t in range(2):
            r = acc(t, q)
            a(f"v_cvt_pk_bf16_f32 v{r}, v{r}, v{r+1}")
            a(f"v_cvt_pk_bf16_f32 v{r+1}, v{r+2}, v{r+3}")
            a(f"ds_write_b64 v{vST[0]}, {vr(r,2)} offset:{t*16*144 + q*32}")
    a("s_waitcnt lgkmcnt(0)")
    for j in range(4):
        a(f"ds_read_b128 {vr(QF+4*j,4)}, v{vST[1]} offset:{j*8*144}")
    for j in range(4):
        a(f"s_waitcnt lgkmcnt({3-j})")
        a(f"buffer_store_dwordx4 {vr(QF+4*j,4)}, v{vST[2]}, s[{SO}:{SO+3}], s{sT[4]} offen")
        a(f"s_add_u32 s{sT[4]}, s{sT[4]}, {8*1792}")
    stamp_flush(a, 2, 7, 8, 4, sWV)
    a("s_endpgm")

    a.label("L3_b")
    a(f"s_lshr_b32 s{sT[3]}, s{sW}, 1")
    a(f"s_and_b32 s{sT[4]}, s{sW}, 1")
    a(f"s_lshl_b32 s{sT[0]}, s{sB}, 2")
    a(f"s_lshl_b32 s{sT[1]}, s{sT[4]}, 1")
    a(f"s_add_u32 s{sT[0]}, s{sT[0]}, s{sT[1]}")
    a(f"s_lshl_b32 s{sT[5]}, s{sT[3]}, 6")
    for q in range(4):
        p, ntl = q >> 1, q & 1
        a(f"s_add_u32 s{sT[1]}, s{sT[5]}, {ntl*32}")
        a(f"v_xor_b32 v{vT[5]}, s{sT[1]}, v{vT[7]}")
        a(f"v_add_u32 v{vT[5]}, v{vT[4]}, v{vT[5]}")
        a(f"v_add_u32 v{vTR[q]}, {8192 + p*8192}, v{vT[5]}")
    a(f"s_lshl_b32 s{sT[1]}, s{sT[4]}, 12")
    a(f"v_add_u32 v{vPR[0]}, s{sT[1]}, v{vPO}")
    finish_bases()
    RP = 72
    a(f"s_mul_i32 s{sT[1]}, s{sW}, 4608")
    a(f"s_add_u32 s{sT[1]}, s{sT[1]}, {STG}")
    a(f"v_mul_u32_u24 v{vST[0]}, {RP}, v{vM}")
    a(f"v_lshl_add_u32 v{vST[0]}, v{vG}, 3, v{vST[0]}")
    a(f"v_add_u32 v{vST[0]}, s{sT[1]}, v{vST[0]}")
    a(f"v_lshrrev_b32 v{vT[5]}, 2, v{vLANE}")
    a(f"v_and_b32 v{vT[6]}, 3, v{vLANE}")
    a(f"v_mul_u32_u24 v{vST[1]}, {RP}, v{vT[5]}")
    a(f"v_lshl_add_u32 v{vST[1]}, v{vT[6]}, 4, v{vST[1]}")
    a(f"v_add_u32 v{vST[1]}, s{sT[1]}, v{vST[1]}")
    a(f"s_lshl_b32 s{sT[1]}, s{sA}, 3")
    a(f"s_lshl_b32 s{sT[2]}, s{sT[3]}, 2")
    a(f"s_add_u32 s{sT[1]}, s{sT[1]}, s{sT[2]}")
    a(f"s_lshr_b32 s{sT[2]}, s{sT[1]}, 6")
    a(f"s_bfe_u32 s{sT[5]}, s{sT[1]}, 0x10005")
    a(f"s_and_b32 s{sT[1]}, s{sT[1]}, 31")
    a(f"s_lshl_b32 s{sT[1]}, s{sT[1]}, 5")
    a(f"s_lshl_b32 s{sT[2]}, s{sT[2]}, 4")
    a(f"s_add_u32 s{sT[1]}, s{sT[1]}, s{sT[2]}")
    a(f"s_lshl_b32 s{sT[5]}, s{sT[5]}, 2")
    a(f"s_add_u32 s{sT[1]}, s{sT[1]}, s{sT[5]}")
    a(f"v_and_b32 v{vT[0]}, 3, v{vT[5]}")
    a(f"v_bfe_u32 v{vT[1]}, v{vT[5]}, 2, 1")
    a(f"v_lshl_add_u32 v{vT[0]}, v{vT[1]}, 3, v{vT[0]}")
    a(f"v_lshrrev_b32 v{vT[1]}, 3, v{vT[5]}")
    a(f"v_lshl_add_u32 v{vT[0]}, v{vT[1]}, 5, v{vT[0]}")
    a(f"v_mul_u32_u24 v{vST[2]}, 1792, v{vT[0]}")
    a(f"v_lshl_add_u32 v{vST[2]}, v{vT[6]}, 4, v{vST[2]}")
    a(f"s_mul_i32 s{sT[1]}, s{sT[1]}, 1792")
    a(f"s_lshl_b32 s{sT[0]}, s{sT[0]}, 5")
    a(f"s_add_u32 s{sT[1]}, s{sT[1]}, s{sT[0]}")
    a(f"s_add_u32 s{sT[4]}, s{sT[1]}, 896")
    a("s_waitcnt lgkmcnt(0)")
    srd(a, SO, 6, 2048 * 1792)
    mainloop(True)
    a("s_nop 7")
    for ntl in range(2):
        for t in range(2):
            r0, r1 = acc(t, ntl), acc(t, 2 + ntl)
            w0 = qf(0, 0) + 4 * t + 8 * ntl
            for i in range(4):
                a(f"v_add_f32 v{w0+i}, v{r0+i}, v{r1+i}")
                a(f"v_sub_f32 v{r1+i}, v{r0+i}, v{r1+i}")
            a(f"v_cvt_pk_bf16_f32 v{r0}, v{w0}, v{w0+1}")
            a(f"v_cvt_pk_bf16_f32 v{r0+1}, v{w0+2}, v{w0+3}")
            a(f"v_cvt_pk_bf16_f32 v{r0+2}, v{r1}, v{r1+1}")
            a(f"v_cvt_pk_bf16_f32 v{r0+3}, v{r1+2}, v{r1+3}")
            a(f"ds_write_b64 v{vST[0]}, {vr(r0,2)} offset:{ntl*16*RP + t*32}")
            a(f"ds_write_b64 v{vST[0]}, {vr(r0+2,2)} offset:{(32+ntl*16)*RP + t*32}")
    a("s_waitcnt lgkmcnt(0)")
    for jj in range(4):
        a(f"ds_read_b64 {vr(QF+16+4*jj,2)}, v{vST[1]} offset:{jj*16*RP}")
        a(f"ds_read_b64 {vr(QF+16+4*jj+2,2)}, v{vST[1]} offset:{jj*16*RP+8}")
    for jj in range(4):
        j, ntl = jj >> 1, jj & 1
        a(f"s_add_u32 s{sT[2]}, s{sT[4]}, {(j*1024 + ntl*64)*1792}")
        a(f"s_waitcnt lgkmcnt({6-2*jj})")
        a(f"buffer_store_dwordx4 {vr(QF+16+4*jj,4)}, v{vST[2]}, s[{SO}:{SO+3}], s{sT[2]} offen")
    stamp_flush(a, 2, 7, 8, 4, sWV)
    a.label("L3_end")
    a("s_endpgm")
    return kdesc(name, 128, 100, 128), f"; @launch kernel={name} grid=(224,1,1) block=(512,1,1) lds={K3_LDS}"
```

```python
import sys
from common import *
from k1 import gen_k1
from k2 import gen_k2, fft_tables
from k3 import gen_k3

HEADER = """; Kernarg layout for this problem (72 bytes, ptrs only, base s[0:1]):
"""

def build(path):
    a = Asm()
    descs, launches = [], []
    for g in (gen_k1, gen_k2, gen_k3):
        d, l = g(a)
        descs.append(d); launches.append(l)
    out = HEADER + "\n".join(launches) + "\n"
    out += '.amdgcn_target "amdgcn-amd-amdhsa--gfx950"\n.text\n'
    out += a.text()
    out += '.section .rodata,"a"\n'
    for d in descs:
        out += ".p2align 6\n" + d
    out += ".p2align 8\nffttab:\n"
    t = fft_tables()
    t64 = t[0::2].astype(np.uint64) | (t[1::2].astype(np.uint64) << np.uint64(32))
    for i in range(0, len(t64), 8):
        out += ".quad " + ",".join(f"{int(x):#x}" for x in t64[i:i+8]) + "\n"
    for j in range(448):
        out += f".set FC{j}, {bf16_bits(np.cos(2*np.pi*j/448)):#x}\n"
    out += """.altmacro
.macro fone a
.short FC\\a
.endm
.p2align 8
ftab:
.set fd, 0
.rept 448
.set fi, 0
.rept 225
fone %fi
.set fi, (fi + fd) % 448
.endr
.set fi, (112 + fd) % 448
.rept 223
fone %fi
.set fi, (fi + fd) % 448
.endr
.set fd, fd+1
.endr
.p2align 8
ftab2:
.set fb, 0
.rept 28
.set fk, 0
.rept 56
.set fd, fb
.rept 16
.set ff, fk
.rept 8
.if ff < 225
fone %((fd * ff) % 448)
.else
fone %((fd * (ff - 224) + 112) % 448)
.endif
.set ff, ff+1
.endr
.set fd, fd+1
.endr
.set fk, fk+8
.endr
.set fb, fb+16
.endr
.noaltmacro
"""
    open(path, "w").write(out)

if __name__ == "__main__":
    build(sys.argv[1] if len(sys.argv) > 1 else "concat_heads__mha_block__spectral_gfnet__prompt.s")
```
